```python
import torch

def _softmax(x, axis=-1):
    return torch.softmax(x, dim=axis)
def _gelu(x):
    return torch.nn.functional.gelu(x, approximate="tanh")
def _silu(x):
    return torch.nn.functional.silu(x)
def _sigmoid(x):
    return torch.sigmoid(x)
def _layernorm(x, axis=-1, eps=1e-5):
    m = x.mean(dim=axis, keepdim=True)
    v = x.var(dim=axis, keepdim=True, unbiased=False)
    return (x - m) / torch.sqrt(v + eps)
def _scatter_add(tgt, idx, src, axis=0):
    return tgt.clone().index_add_(axis, idx, src)
def _segment_sum(src, seg, n):
    out = torch.zeros((n,) + src.shape[1:], dtype=src.dtype)
    return out.index_add_(0, seg, src)
def _pad(x, pw):
    flat = tuple(v for pair in reversed(pw) for v in pair)
    return torch.nn.functional.pad(x, flat)

kernel_name = 'parallel_sum__ssm_conv_s5__mixer_channel_mlp__prompt'

def setup_inputs():

    _w = (lambda a: (lambda t: t.to(torch.bfloat16) if t.is_floating_point() else t)(torch.as_tensor(a)))
    def _A_setup():
        B, S, D = 1, 2048, 512
        P = D
        Lambda_re = -0.5 * (lambda _x: torch.exp(torch.as_tensor(_x)))((lambda *s: torch.randn(*s, dtype=torch.bfloat16) * 0.2)(P))
        Lambda_im = (lambda *s: torch.randn(*s, dtype=torch.bfloat16) * 0.8)(P) * 1.0
        B_re = (lambda *s: torch.randn(*s, dtype=torch.bfloat16) * 0.2)(P, D) * (D ** -0.5)
        B_im = (lambda *s: torch.randn(*s, dtype=torch.bfloat16) * 0.2)(P, D) * (D ** -0.5)
        C_re = (lambda *s: torch.randn(*s, dtype=torch.bfloat16) * 0.2)(D, P) * (P ** -0.5)
        C_im = (lambda *s: torch.randn(*s, dtype=torch.bfloat16) * 0.2)(D, P) * (P ** -0.5)
        log_dt = (lambda *s: torch.randn(*s, dtype=torch.bfloat16) * 0.2)(P) * 0.3 - 2.0
        Dskip = (lambda *s: torch.randn(*s, dtype=torch.bfloat16) * 0.05)(D)
        return {
            "x": _w((lambda *s: torch.randn(*s, dtype=torch.bfloat16) * 0.05)(B, S, D)),
            "Lambda_re": _w(Lambda_re),
            "Lambda_im": _w(Lambda_im),
            "B_re": _w(B_re),
            "B_im": _w(B_im),
            "C_re": _w(C_re),
            "C_im": _w(C_im),
            "log_dt": _w(log_dt),
            "Dskip": _w(Dskip),
        }
    _A_in = _A_setup()

    def _B_setup():
        B, S, D, F = 1, 2048, 512, 1376
        return {
            "x": _w((lambda *s: torch.randn(*s, dtype=torch.bfloat16) * 0.05)(B, S, D)),
            "w1": _w((lambda *s: torch.randn(*s, dtype=torch.bfloat16) * 1.6)(D, F) * (D ** -0.5)),
            "b1": _w((lambda *s: torch.randn(*s, dtype=torch.bfloat16) * 0.8)(F)),
            "w2": _w((lambda *s: torch.randn(*s, dtype=torch.bfloat16) * 0.05)(F, D) * (F ** -0.5)),
            "b2": _w((lambda *s: torch.randn(*s, dtype=torch.bfloat16) * 0.05)(D)),
        }
    _B_in = _B_setup()

    return {
        "A_x": _A_in["x"],
        "A_Lambda_re": _A_in["Lambda_re"],
        "A_Lambda_im": _A_in["Lambda_im"],
        "A_B_re": _A_in["B_re"],
        "A_B_im": _A_in["B_im"],
        "A_C_re": _A_in["C_re"],
        "A_C_im": _A_in["C_im"],
        "A_log_dt": _A_in["log_dt"],
        "A_Dskip": _A_in["Dskip"],
        "B_x": _B_in["x"],
        "B_w1": _B_in["w1"],
        "B_b1": _B_in["b1"],
        "B_w2": _B_in["w2"],
        "B_b2": _B_in["b2"],
    }

def reference(A_x, A_Lambda_re, A_Lambda_im, A_B_re, A_B_im, A_C_re, A_C_im, A_log_dt, A_Dskip, B_x, B_w1, B_b1, B_w2, B_b2):
    def _A_ref(x, Lambda_re, Lambda_im, B_re, B_im, C_re, C_im, log_dt, Dskip):
        Bsz, L, H = x.shape
        Lam = Lambda_re + 1j * Lambda_im
        Bmat = B_re + 1j * B_im
        Cmat = C_re + 1j * C_im
        dt = torch.exp(log_dt)
        Lam_bar = torch.exp(dt * Lam)
        B_bar = ((Lam_bar - 1.0) / Lam)[:, None] * Bmat
        Bu = torch.einsum("bld,pd->blp", x + 0j, B_bar)
        h = torch.zeros_like(Bu[:, 0, :])
        hs = []
        for t in range(L):
            h = Lam_bar[None, :] * h + Bu[:, t, :]
            hs.append(h)
        hseq = torch.stack(hs, 1)
        y = 2.0 * torch.einsum("blp,dp->bld", hseq, Cmat).real + x * Dskip[None, None, :]
        return y

    def _B_ref(x, w1, b1, w2, b2):
        y = _layernorm(x, axis=-1)
        h = _gelu(torch.einsum("bsd,df->bsf", y, w1) + b1)
        return torch.einsum("bsf,fd->bsd", h, w2) + b2

    x = A_x
    xn = _layernorm(x, axis=-1)
    return x + _A_ref(xn, A_Lambda_re, A_Lambda_im, A_B_re, A_B_im, A_C_re, A_C_im, A_log_dt, A_Dskip) + _B_ref(xn, B_w1, B_b1, B_w2, B_b2)
```

```python
KNAME = 'parallel_sum__ssm_conv_s5__mixer_channel_mlp__prompt'
KARG = dict(x=0, lre=8, lim=16, bre=24, bim=32, cre=40, cim=48, logdt=56, dskip=64, bx=72, w1=80, b1=88, w2=96, b2=104, out=112, dbg=120, ws=128)
SIZES = dict(x=2048*512*2, lre=1024, lim=1024, bre=512*512*2, bim=512*512*2, cre=512*512*2, cim=512*512*2, logdt=1024, dskip=1024,
             w1=512*1376*2, b1=1376*2, w2=1376*512*2, b2=1024, out=2048*512*4, dbg=256, ws=268435456)

class Asm:
    def __init__(self):
        self.lines = []
        self.lab = 0
    def __call__(self, s):
        for l in s.split('\n'):
            self.lines.append('    ' + l.strip() if l.strip() and not l.strip().endswith(':') else l.strip())
    def label(self, name):
        self.lines.append(name + ':')
    def newlabel(self, p='L'):
        self.lab += 1
        return f'{p}_{self.lab}'
    def text(self):
        return '\n'.join(self.lines) + '\n'

def header(launches):
    s = ''
    if len(launches) == 1 and launches[0][0] == KNAME + '_kernel':
        k, g, b, l = launches[0]
        s += f'; @launch grid=({g[0]},{g[1]},{g[2]}) block=({b[0]},{b[1]},{b[2]}) lds={l}\n'
    else:
        for k, g, b, l in launches:
            s += f'; @launch kernel={k} grid=({g[0]},{g[1]},{g[2]}) block=({b[0]},{b[1]},{b[2]}) lds={l}\n'
    s += '.amdgcn_target "amdgcn-amd-amdhsa--gfx950"\n.text\n'
    return s

def kernel_begin(name):
    return f'.globl {name}\n.p2align 8\n.type {name},@function\n{name}:\n'

def descriptor(name, vgpr=256, sgpr=102, accum=256, extra=''):
    return f'''.amdhsa_kernel {name}
  .amdhsa_next_free_vgpr {vgpr}
  .amdhsa_next_free_sgpr {sgpr}
  .amdhsa_accum_offset {accum}
  .amdhsa_group_segment_fixed_size 0
  .amdhsa_kernarg_size 136
  .amdhsa_user_sgpr_count 2
  .amdhsa_user_sgpr_kernarg_segment_ptr 1
  .amdhsa_system_sgpr_workgroup_id_x 1
{extra}.end_amdhsa_kernel
'''

def rodata_begin():
    return '.section .rodata,"a"\n.p2align 6\n'
```

```python
import re

TRANS = ('v_exp_f32', 'v_log_f32', 'v_rcp_f32', 'v_rsq_f32', 'v_sqrt_f32', 'v_sin_f32', 'v_cos_f32', 'v_rcp_iflag_f32')
REG_RE = re.compile(r'^(-|abs\(|\|)?([vas])(\d+|\[(\d+):(\d+)\])\)?\|?$')

def regs_of(op):
    op = op.strip()
    if op in ('vcc',): return {('s', 106), ('s', 107)}
    if op == 'vcc_lo': return {('s', 106)}
    if op == 'vcc_hi': return {('s', 107)}
    if op == 'exec': return {('s', 126), ('s', 127)}
    if op == 'm0': return {('s', 124)}
    m = REG_RE.match(op)
    if not m: return set()
    k = m.group(2)
    if m.group(4) is not None:
        return {(k, i) for i in range(int(m.group(4)), int(m.group(5)) + 1)}
    return {(k, int(m.group(3)))}

def split_ops(s):
    out = []; depth = 0; cur = ''
    for ch in s:
        if ch in '[(': depth += 1
        if ch in '])': depth -= 1
        if ch == ',' and depth == 0:
            out.append(cur.strip()); cur = ''
        else: cur += ch
    if cur.strip(): out.append(cur.strip())
    return out

class I:
    pass

def mfma_passes(mn):
    if '32x32x16' in mn: return 8
    if '16x16x32' in mn: return 4
    if '4x4x4' in mn: return 2
    raise ValueError(mn)

def parse(line):
    t = line.split(';')[0].strip()
    ins = I(); ins.text = line; ins.mn = None
    ins.rd = set(); ins.wr = set(); ins.cls = 'other'; ins.name = None
    m = re.search(r';@id=(\S+)', line)
    if m: ins.name = m.group(1)
    if not t or t.endswith(':') or t.startswith('.'):
        ins.cls = 'label' if t.endswith(':') else 'none'
        return ins
    parts = t.split(None, 1)
    mn = parts[0]; ins.mn = mn
    rest = parts[1] if len(parts) > 1 else ''
    ops = split_ops(rest)
    mods = ''
    if ops:
        lp = ops[-1].split(None, 1)
        if len(lp) > 1 and not lp[0].endswith(':'):
            ops[-1] = lp[0]; mods = lp[1]
    ins.mods = mods; ins.ops = ops
    R = regs_of
    if mn.startswith('@'):
        ins.cls = 'pseudo'; return ins
    if mn.startswith('v_mfma'):
        ins.cls = 'mfma'; ins.passes = mfma_passes(mn)
        ins.D = R(ops[0]); ins.A = R(ops[1]); ins.B = R(ops[2]); ins.C = R(ops[3])
        ins.wr = set(ins.D); ins.rd = ins.A | ins.B | ins.C
    elif mn.startswith('v_'):
        ins.cls = 'valu'
        ins.trans = any(mn.startswith(x) for x in TRANS)
        ins.dpp = '_dpp' in mn or 'quad_perm' in mods or 'row_' in mods
        ins.sdwa = '_sdwa' in mn
        ins.perm = mn.startswith('v_permlane')
        ins.rdlane = mn.startswith('v_readfirstlane') or mn.startswith('v_readlane')
        if ins.perm:
            ins.wr = R(ops[0]) | R(ops[1]); ins.rd = set(ins.wr)
        elif mn.startswith(('v_add_co', 'v_sub_co', 'v_addc_co', 'v_subb_co', 'v_subrev_co', 'v_div_scale', 'v_mad_u64')):
            ins.wr = R(ops[0]) | R(ops[1])
            for o in ops[2:]: ins.rd |= R(o)
        else:
            ins.wr = R(ops[0])
            for o in ops[1:]: ins.rd |= R(o)
            if mn.startswith(('v_fmac', 'v_dot2c', 'v_mac', 'v_writelane')) or ins.dpp or ins.sdwa: ins.rd |= R(ops[0])
            if mn.startswith('v_cndmask') and len(ops) == 3: ins.rd |= R('vcc')
            if mn.startswith('v_cmpx'): raise ValueError('no cmpx')
    elif mn.startswith('ds_'):
        ins.cls = 'ds'
        if mn.startswith(('ds_read', 'ds_bpermute', 'ds_permute', 'ds_swizzle')):
            ins.wr = R(ops[0])
            for o in ops[1:]: ins.rd |= R(o)
        else:
            for o in ops: ins.rd |= R(o)
    elif mn.startswith(('buffer_', 'global_')):
        ins.cls = 'vm'
        ins.lds = (' lds' in ' ' + mods) or '_lds_' in mn
        ins.store = 'store' in mn or 'atomic' in mn
        ins.wide = 'store' in mn and ('x4' in mn or 'x3' in mn)
        if mn in ('buffer_wbl2', 'buffer_inv'):
            pass
        elif ins.lds:
            for o in ops: ins.rd |= R(o)
            ins.rd |= R('m0')
        elif 'load' in mn:
            ins.wr = R(ops[0])
            for o in ops[1:]: ins.rd |= R(o)
        else:
            for o in ops: ins.rd |= R(o)
            ins.data = R(ops[0]) if mn.startswith('buffer_') else R(ops[1])
            if 'atomic' in mn and 'sc0' in mods: ins.wr = R(ops[0])
    elif mn.startswith(('s_load', 's_buffer_load', 's_memtime', 's_memrealtime')):
        ins.cls = 'smem'
        ins.wr = R(ops[0])
        for o in ops[1:]: ins.rd |= R(o)
    elif mn.startswith('s_'):
        ins.cls = 'salu'
        if mn.startswith(('s_cmp', 's_cbranch', 's_branch', 's_waitcnt', 's_nop', 's_barrier', 's_endpgm', 's_sleep', 's_setprio', 's_bitcmp')):
            for o in ops: ins.rd |= R(o)
        else:
            ins.wr = R(ops[0]) if ops else set()
            for o in ops[1:]: ins.rd |= R(o)
            if 'saveexec' in mn: ins.wr |= R('exec')
    else:
        raise ValueError('unknown instr: ' + line)
    return ins

def need_states(p, c):
    n = 0
    if p.cls == 'valu':
        wv = {r for r in p.wr if r[0] in 'va'}
        ws = {r for r in p.wr if r[0] == 's'}
        if c.cls == 'mfma' and wv & c.rd: n = max(n, 2)
        if c.cls == 'valu':
            if p.trans and wv & c.rd: n = max(n, 1)
            if p.sdwa and wv & (c.rd | c.wr): n = max(n, 1)
            if ws & c.rd: n = max(n, 4 if c.mn.startswith(('v_readlane', 'v_writelane', 'v_div_fmas')) else 2)
            if c.rdlane and wv & c.rd: n = max(n, 1)
            if (c.dpp or c.perm) and wv & c.rd: n = max(n, 2)
        if c.cls == 'vm' and ws & c.rd: n = max(n, 5)
        if c.cls in ('salu', 'smem') and ws & c.rd: n = max(n, 2)
        if c.cls in ('ds', 'vm') and p.trans and wv & c.rd: n = max(n, 1)
    elif p.cls == 'mfma':
        k = {2: 0, 4: 1, 8: 2, 16: 3}[p.passes]
        if c.cls == 'mfma':
            if p.D & (c.A | c.B): n = max(n, (5, 8, 12, 20)[k])
            if p.D & c.C:
                if p.D == c.C and p.passes == c.passes: n = max(n, (2, 0, 0, 0)[k])
                else: n = max(n, (4, 6, 10, 18)[k])
            elif p.D & c.D: n = max(n, (4, 6, 10, 18)[k])
        elif c.cls in ('valu', 'ds', 'vm'):
            if p.D & (c.rd | c.wr): n = max(n, (5, 8, 12, 20)[k])
            if c.cls == 'valu' and p.C & c.wr: n = max(n, (1, 3, 7, 15)[k])
    elif p.cls == 'salu':
        if ('s', 124) in p.wr and c.cls == 'vm' and getattr(c, 'lds', False): n = max(n, 1)
    elif p.cls == 'vm':
        if getattr(p, 'wide', False) and p.data & c.wr: n = max(n, 2 if c.cls == 'valu' else 1)
    return n

def states_of(ins):
    if ins.cls in ('label', 'none', 'pseudo'): return 0
    if ins.mn == 's_nop': return int(ins.ops[0], 0) + 1
    return 1

def process(lines):
    out = []
    vmq = []
    lgq = []
    raw = False
    snaps = {}
    def emit(text):
        out.append(parse(text))
    def wait(vm=None, lg=None):
        parts = []
        if vm is not None and vm < len(vmq):
            v = min(vm, 63); parts.append(f'vmcnt({v})'); del vmq[:len(vmq) - v]
        if lg is not None and lg < len(lgq):
            if any(x.cls == 'smem' for x in lgq): lg = 0
            l = min(lg, 15); parts.append(f'lgkmcnt({l})'); del lgq[:len(lgq) - l]
        if parts: emit('    s_waitcnt ' + ' '.join(parts))
    for line in lines:
        ins = parse(line)
        if ins.cls == 'pseudo':
            if ins.mn == '@raw': raw = True
            elif ins.mn == '@endraw': raw = False
            elif ins.mn == '@wait':
                vm = lg = None
                for nm in ins.ops:
                    for q, which in ((vmq, 'vm'), (lgq, 'lg')):
                        idx = [i for i, x in enumerate(q) if x.name == nm]
                        if idx:
                            n = len(q) - 1 - idx[-1]
                            if which == 'vm': vm = n if vm is None else min(vm, n)
                            else: lg = n if lg is None else min(lg, n)
                wait(vm, lg)
            elif ins.mn == '@waitds': wait(None, 0)
            elif ins.mn == '@waitvm': wait(0, None)
            elif ins.mn == '@waitregs':
                rs = set()
                for o in ins.ops: rs |= regs_of(o)
                vm = lg = None
                for i, x in enumerate(vmq):
                    if x.wr & rs: vm = len(vmq) - 1 - i
                for i, x in enumerate(lgq):
                    if x.wr & rs: lg = len(lgq) - 1 - i
                wait(vm, lg)
            elif ins.mn == '@snap': snaps[ins.ops[0]] = (list(vmq), list(lgq))
            elif ins.mn == '@restore':
                a, b = snaps[ins.ops[0]]; vmq[:] = a; lgq[:] = b
            else: raise ValueError(line)
            continue
        if ins.cls in ('label', 'none'):
            out.append(ins); continue
        if not raw:
            touch = ins.rd | ins.wr
            vm = lg = None
            for i, x in enumerate(vmq):
                if x.wr & touch: vm = len(vmq) - 1 - i
            for i, x in enumerate(lgq):
                if x.wr & touch: lg = len(lgq) - 1 - i
            wait(vm, lg)
            if ins.mn == 's_waitcnt':
                m = re.search(r'vmcnt\((\d+)\)', ins.text)
                if m and int(m.group(1)) < len(vmq): del vmq[:len(vmq) - int(m.group(1))]
                m = re.search(r'lgkmcnt\((\d+)\)', ins.text)
                if m and int(m.group(1)) < len(lgq): del lgq[:len(lgq) - int(m.group(1))]
        need = 0; dist = 0
        for p in reversed(out):
            if dist >= 20: break
            if p.cls not in ('label', 'none'):
                need = max(need, need_states(p, ins) - dist)
            dist += states_of(p)
        while need > 0:
            k = min(need, 16); emit(f'    s_nop {k-1}'); need -= k
        out.append(ins)
        if not raw:
            if ins.cls == 'vm':
                vmq.append(ins)
                if len(vmq) > 63: raise ValueError('more than 63 vm ops outstanding at: ' + line)
            elif ins.cls in ('ds', 'smem'): lgq.append(ins)
    return [x.text for x in out]
```

```python
import sys, math, struct
from ag import *
import post

def f32(x): return '0x%08x' % struct.unpack('<I', struct.pack('<f', x))[0]

A2_OFF = 0
RB_STRIDE = 150 * 1024
STATS_OFF = 0xA00000
CARRY_OFF = 0xA10000 + 0x4000
DUMMY_OFF = 0xA40000
EPOCH_OFF = 0xA80000
FLAG_OFF = 0xB00000
TS_OFF = 0xC00000
X_BASE = 0; RI_BASE = 65536; W_BASE = 98304; MISC = 147456
CSX = MISC
B1T = MISC + 2560
STT = MISC + 3072
SMT = MISC + 4096
SEG = MISC + 5632
LDS_TOTAL = 163840

S_MT, S_G, S_W = 3, 4, 5
SRD_X, SRD_RI, SRD_W1, SRD_WS, SRD_CRE, SRD_CIM, SRD_W2, SRD_OUT = 8, 12, 16, 20, 24, 28, 32, 36
S_XB, S_RIB, S_WB, S_ROT = 40, 41, 42, 43
S_MX, S_MRI, S_MW = 44, 45, 46
S_T0, S_T1, S_T2, S_T3 = 47, 48, 49, 50
S_TAG = 52
S_M1, S_M2, S_M16 = 54, 56, 58
S_BLK0 = 60
S_A2 = 61
S_EX = 62
KA = 64
def kp(name):
    r = KA + KARG[name] // 4
    return r
def srd(r): return f's[{r}:{r+3}]'
def vr(a, n): return f'v[{a}:{a+n-1}]'
def ar(a, n): return f'a[{a}:{a+n-1}]'

def mk_srd(a, r, name):
    p = kp(name)
    a(f's_mov_b32 s{r}, s{p}\ns_mov_b32 s{r+1}, s{p+1}\ns_mov_b32 s{r+2}, {SIZES[name]}\ns_mov_b32 s{r+3}, 0x20000')

def load_kernargs(a):
    a(f's_load_dwordx16 s[{KA}:{KA+15}], s[0:1], 0')
    a(f's_load_dwordx16 s[{KA+16}:{KA+31}], s[0:1], 64')
    a(f's_load_dwordx2 s[{KA+32}:{KA+33}], s[0:1], 128')

def code_prefetch(a, nbytes, vtmp, vdst, label):
    a(f's_getpc_b64 s[6:7]')
    a(f'v_lshlrev_b32 v{vtmp}, 7, v0')
    a(f'v_min_u32 v{vtmp}, {label}, v{vtmp}')
    a(f'global_load_dword v{vdst}, v{vtmp}, s[6:7]')

V_LANE = 1
VX = 4; VW = 8; AX = 11; AR = 15; AW = 19; AG = 23
V_L16 = 25
V_I4 = 26
SEL = 28
P_AR, P_AI, P_KR, P_KI, P_A16R, P_A16I, P_A128R, P_A128I, P_A256R, P_A256I, P_PWR, P_PWI = range(32, 44)
V_TAU = 44
V_SIG = 45
F = (48, 72); G = (96, 100)
RS = 104; GR = (108, 112); CS = 116
DRE = 144; DIM = 160; DM = (176, 192, 208)
T = 224

def bf16r(a, d, s):
    a(f'v_cvt_pk_bf16_f32 v{d}, v{s}, v{s}')
    a(f'v_lshlrev_b32 v{d}, 16, v{d}')

def cexp(a, dr, di, zl, zrev, scale_reg_or_const, t0, t1):
    sc = scale_reg_or_const
    a(f'v_mul_f32 v{t0}, {sc}, v{zl}')
    a(f'v_mul_f32 v{t1}, {sc}, v{zrev}')
    a(f'v_exp_f32 v{t0}, v{t0}')
    a(f'v_fract_f32 v{t1}, v{t1}')
    a(f'v_cos_f32 v{dr}, v{t1}')
    a(f'v_sin_f32 v{di}, v{t1}')
    a(f'v_mul_f32 v{dr}, v{dr}, v{t0}')
    a(f'v_mul_f32 v{di}, -v{di}, v{t0}')

def ids(a):
    a(f'v_lshrrev_b32 v2, 6, v0')
    a(f'v_and_b32 v{V_LANE}, 63, v0')
    a(f'v_readfirstlane_b32 s{S_W}, v2')
    a(f's_and_b32 s{S_T0}, s2, 7')
    a(f's_lshr_b32 s{S_T1}, s2, 3')
    a(f's_and_b32 s{S_MT}, s{S_T0}, 1')
    a(f's_lshl_b32 s{S_MT}, s{S_MT}, 3')
    a(f's_and_b32 s{S_T2}, s{S_T1}, 7')
    a(f's_add_u32 s{S_MT}, s{S_MT}, s{S_T2}')
    a(f's_lshr_b32 s{S_G}, s{S_T0}, 1')
    a(f's_lshl_b32 s{S_G}, s{S_G}, 2')
    a(f's_lshr_b32 s{S_T2}, s{S_T1}, 3')
    a(f's_add_u32 s{S_G}, s{S_G}, s{S_T2}')

def dma_chunk(a, kc):
    slot = kc & 3
    a(f's_add_u32 s{S_T0}, s{S_ROT}, {kc}')
    a(f's_and_b32 s{S_T0}, s{S_T0}, 7')
    a(f's_lshl_b32 s{S_T1}, s{S_T0}, 7')
    a(f's_add_u32 m0, s{S_MX}, {slot*4096}')
    a(f's_add_u32 s{S_T2}, s{S_XB}, s{S_T1}')
    for q in range(4):
        a(f'buffer_load_dwordx4 v{VX+q}, {srd(SRD_X)}, s{S_T2} offen offset:{q*1024} lds')
    a(f's_add_u32 m0, s{S_MRI}, {slot*8192}')
    a(f's_add_u32 s{S_T2}, s{S_RIB}, s{S_T1}')
    for q in range(2):
        a(f'buffer_load_dwordx4 v{VX+q}, {srd(SRD_RI)}, s{S_T2} offen offset:{q*1024} lds')
    a(f's_mul_i32 s{S_T0}, s{S_T0}, {64*2752}')
    a(f's_add_u32 m0, s{S_MW}, {slot*12288}')
    a(f's_add_u32 s{S_T2}, s{S_WB}, s{S_T0}')
    for u in range(3):
        a(f'buffer_load_dwordx4 v{VW+u}, {srd(SRD_W1)}, s{S_T2} offen offset:{u*1024} lds' + (f' ;@id=dma{kc}' if u == 2 else ''))

def frag_reads(kc, s):
    slot = kc & 3; p = s & 1; f = F[p]
    r = []
    r.append(f'ds_read_b128 {vr(f,4)}, v{AX+s} offset:{slot*4096}')
    r.append(f'ds_read_b128 {vr(f+4,4)}, v{AR+s} offset:{slot*8192}')
    r.append(f'ds_read_b128 {vr(f+8,4)}, v{AR+s} offset:{slot*8192+4096}')
    for b in range(3):
        for u in range(2):
            r.append(f'ds_read_b64_tr_b16 {vr(f+12+4*b+2*u,2)}, v{AW+s} offset:{slot*12288 + 4*u*192 + 64*b}')
    r.append(f'ds_read_b128 {vr(G[p],4)}, v{AG+(s>>1)} offset:{slot*4096 + (s&1)*2048}')
    return r

def step_mfmas(kc, s):
    p = s & 1; f = F[p]
    first = (kc == 0 and s == 0)
    def c(acc, n, z): return '0' if z else vr(acc, n)
    m = []
    m.append(f'v_mfma_f32_32x32x16_bf16 {vr(DRE,16)}, {vr(f,4)}, {vr(f+4,4)}, {c(DRE,16,first)}')
    m.append(f'v_mfma_f32_32x32x16_bf16 {vr(DIM,16)}, {vr(f,4)}, {vr(f+8,4)}, {c(DIM,16,first)}')
    m.append(f'v_mfma_f32_16x16x32_bf16 {vr(RS,4)}, {vr(SEL,4)}, {vr(f,4)}, {c(RS,4,first)}')
    for b in range(3):
        m.append(f'v_mfma_f32_32x32x16_bf16 {vr(DM[b],16)}, {vr(f+12+4*b,4)}, {vr(f,4)}, {c(DM[b],16,first)}')
    m.append(f'v_mfma_f32_16x16x32_bf16 {vr(GR[s&1],4)}, {vr(G[p],4)}, {vr(G[p],4)}, {c(GR[s&1],4,kc==0 and s<2)}')
    if s == 0:
        for b in range(5):
            m.append(f'v_mfma_f32_16x16x32_bf16 {vr(CS+4*b,4)}, {vr(SEL,4)}, {vr(f+4+4*b,4)}, {c(CS+4*b,4,kc==0)}')
    return m

def stage1_setup(a):
    L = V_LANE
    t0, t1, t2, t3 = T, T+1, T+2, T+3
    a(f'v_lshrrev_b32 v{t0}, 5, v{L}')
    a(f'v_lshlrev_b32 v{t0}, 14, v{t0}')
    a(f'v_bfe_u32 v{t1}, v{L}, 3, 2')
    a(f'v_lshl_add_u32 v{t0}, v{t1}, 10, v{t0}')
    a(f'v_and_b32 v{t1}, 7, v{L}')
    a(f'v_lshrrev_b32 v{t2}, 4, v{L}')
    a(f'v_xor_b32 v{t1}, v{t1}, v{t2}')
    a(f'v_lshl_add_u32 v{VX}, v{t1}, 4, v{t0}')
    a(f'v_xor_b32 v{t1}, 4, v{t1}')
    a(f'v_lshl_add_u32 v{VX+1}, v{t1}, 4, v{t0}')
    a(f'v_add_u32 v{VX+1}, 3072, v{VX+1}')
    a(f'v_add_u32 v{VX+2}, {2*3072}, v{VX}')
    a(f'v_add_u32 v{VX+3}, {2*3072}, v{VX+1}')
    for u in range(3):
        a(f'v_add_u32 v{t0}, {u*64}, v{L}')
        a(f'v_mul_u32_u24 v{t1}, 171, v{t0}')
        a(f'v_lshrrev_b32 v{t1}, 11, v{t1}')
        a(f'v_mul_u32_u24 v{t2}, {2752-192}, v{t1}')
        a(f'v_lshl_add_u32 v{VW+u}, v{L}, 4, v{t2}')
    a(f'v_lshlrev_b32 v{V_L16}, 4, v{L}')

def stage1_setup2(a):
    L = V_LANE
    t0, t1, t2, t3 = T, T+1, T+2, T+3
    mk_srd(a, SRD_X, 'x'); mk_srd(a, SRD_W1, 'w1')
    a(f's_cmp_lt_u32 s{S_W}, 2')
    a(f's_cselect_b32 s{SRD_RI}, s{kp("bre")}, s{kp("bim")}')
    a(f's_cselect_b32 s{SRD_RI+1}, s{kp("bre")+1}, s{kp("bim")+1}')
    a(f's_mov_b32 s{SRD_RI+2}, {SIZES["bre"]}\ns_mov_b32 s{SRD_RI+3}, 0x20000')
    a(f's_lshl_b32 s{S_XB}, s{S_MT}, 17')
    a(f's_lshl_b32 s{S_T0}, s{S_W}, 15')
    a(f's_add_u32 s{S_XB}, s{S_XB}, s{S_T0}')
    a(f's_lshl_b32 s{S_RIB}, s{S_G}, 15')
    a(f's_and_b32 s{S_T0}, s{S_W}, 1')
    a(f's_lshl_b32 s{S_T0}, s{S_T0}, 13')
    a(f's_add_u32 s{S_RIB}, s{S_RIB}, s{S_T0}')
    a(f's_mul_i32 s{S_BLK0}, s{S_G}, 3')
    a(f's_min_u32 s{S_BLK0}, s{S_BLK0}, 40')
    a(f's_mul_i32 s{S_WB}, s{S_W}, {16*2752}')
    a(f's_lshl_b32 s{S_T0}, s{S_BLK0}, 6')
    a(f's_add_u32 s{S_WB}, s{S_WB}, s{S_T0}')
    a(f's_add_u32 s{S_ROT}, s{S_MT}, s{S_G}')
    a(f's_add_u32 s{S_ROT}, s{S_ROT}, s{S_G}')
    a(f's_lshl_b32 s{S_MX}, s{S_W}, 14')
    a(f's_lshl_b32 s{S_MRI}, s{S_W}, 11')
    a(f's_add_u32 s{S_MRI}, s{S_MRI}, {RI_BASE}')
    a(f's_mul_i32 s{S_MW}, s{S_W}, 3072')
    a(f's_add_u32 s{S_MW}, s{S_MW}, {W_BASE}')

def stage1_setup3a(a):
    L = V_LANE
    t0, t1, t2, t3, t4, t5, t6, t7 = range(T, T+8)
    mk_srd(a, SRD_WS, 'ws')
    a(f'v_bfe_u32 v{t0}, v{L}, 2, 1')
    a(f'v_bfe_u32 v{t1}, v{L}, 3, 2')
    a(f'v_and_b32 v{t2}, 3, v{L}')
    a(f'v_lshl_add_u32 v{t2}, v{t1}, 2, v{t2}')
    a(f'v_lshl_add_u32 v{V_TAU}, v{t0}, 4, v{t2}')
    a(f's_lshl_b32 s{S_T0}, s{S_G}, 6')
    a(f'v_lshl_add_u32 v{t0}, v{V_TAU}, 1, s{S_T0}')
    a(f'global_load_ushort v{t5}, v{t0}, s[{kp("lre")}:{kp("lre")+1}]')
    a(f'global_load_ushort v{t6}, v{t0}, s[{kp("lim")}:{kp("lim")+1}]')
    a(f'global_load_ushort v{t7}, v{t0}, s[{kp("logdt")}:{kp("logdt")+1}]')
    a(f'v_min_u32 v{t0}, 95, v0')
    a(f's_lshl_b32 s{S_T0}, s{S_BLK0}, 6')
    a(f'v_lshl_add_u32 v{t1}, v{t0}, 1, s{S_T0}')
    a(f'global_load_ushort v{T+8}, v{t1}, s[{kp("b1")}:{kp("b1")+1}]')
    a(f'v_lshlrev_b32 v{T+9}, 2, v{t0}')
    a(f's_lshl_b32 s{S_T0}, s{S_G}, 7')
    a(f's_add_u32 s{S_T0}, s{S_T0}, {EPOCH_OFF}')
    a(f'v_mov_b32 v{t0}, 0')
    a(f'buffer_load_dwordx2 {vr(T+10,2)}, v{t0}, {srd(SRD_WS)}, s{S_T0} offen sc1')

def stage1_setup3b(a):
    L = V_LANE
    t0, t1, t2, t3, t4, t5, t6, t7 = range(T, T+8)
    a(f'v_and_b32 v{t0}, 31, v{L}')
    a(f'v_lshlrev_b32 v{t0}, 7, v{t0}')
    a(f'v_bfe_u32 v{t1}, v{L}, 1, 3')
    a(f'v_lshrrev_b32 v{t2}, 5, v{L}')
    a(f'v_xor_b32 v{t1}, v{t1}, v{t2}')
    for s in range(4):
        a(f's_add_u32 s{S_T0}, s{S_W}, {s}')
        a(f's_and_b32 s{S_T0}, s{S_T0}, 3')
        a(f's_lshl_b32 s{S_T1}, s{S_T0}, 1')
        a(f'v_xor_b32 v{t2}, s{S_T1}, v{t1}')
        a(f'v_lshl_add_u32 v{t2}, v{t2}, 4, v{t0}')
        a(f'v_add_u32 v{AX+s}, s{S_MX}, v{t2}')
        a(f'v_add_u32 v{AR+s}, {RI_BASE}, v{t2}')
        a(f's_mul_i32 s{S_T1}, s{S_T0}, {16*192}')
        a(f's_add_u32 s{S_T1}, s{S_T1}, {W_BASE}')
        a(f'v_mov_b32 v{AW+s}, s{S_T1}')
    a(f'v_lshrrev_b32 v{t0}, 5, v{L}')
    a(f'v_bfe_u32 v{t1}, v{L}, 2, 2')
    a(f'v_lshl_add_u32 v{t0}, v{t0}, 3, v{t1}')
    a(f'v_mul_u32_u24 v{t0}, 192, v{t0}')
    a(f'v_bfe_u32 v{t1}, v{L}, 4, 1')
    a(f'v_lshl_add_u32 v{t0}, v{t1}, 5, v{t0}')
    a(f'v_and_b32 v{t1}, 3, v{L}')
    a(f'v_lshl_add_u32 v{t0}, v{t1}, 3, v{t0}')
    for s in range(4):
        a(f'v_add_u32 v{AW+s}, v{AW+s}, v{t0}')
    a(f'v_and_b32 v{t0}, 15, v{L}')
    a(f'v_lshlrev_b32 v{t0}, 7, v{t0}')
    a(f'v_add_u32 v{t0}, s{S_MX}, v{t0}')
    a(f'v_bfe_u32 v{t1}, v{L}, 1, 3')
    a(f'v_lshrrev_b32 v{t2}, 4, v{L}')
    a(f'v_xor_b32 v{t1}, v{t1}, v{t2}')
    a(f'v_lshl_add_u32 v{AG}, v{t1}, 4, v{t0}')
    a(f'v_xor_b32 v{t1}, 4, v{t1}')
    a(f'v_lshl_add_u32 v{AG+1}, v{t1}, 4, v{t0}')
    a(f'v_lshrrev_b32 v{t0}, 2, v{L}')
    a(f'v_xor_b32 v{t0}, v{t0}, v{t2}')
    a(f'v_and_b32 v{t0}, 1, v{t0}')
    a(f'v_cmp_eq_u32 vcc, 0, v{t0}')
    a(f'v_mov_b32 v{t1}, 0x3f803f80')
    for j in range(4):
        a(f'v_cndmask_b32 v{SEL+j}, 0, v{t1}, vcc')
    a(f's_mov_b32 s{S_M1}, 0xaaaaaaaa\ns_mov_b32 s{S_M1+1}, 0xaaaaaaaa')
    a(f's_mov_b32 s{S_M2}, 0xcccccccc\ns_mov_b32 s{S_M2+1}, 0xcccccccc')
    a(f's_mov_b32 s{S_M16}, 0xffff0000\ns_mov_b32 s{S_M16+1}, 0xffff0000')
    a(f'v_lshrrev_b32 v{t0}, 5, v{L}')
    a(f's_lshl_b32 s{S_T0}, s{S_W}, 1')
    a(f'v_add_u32 v{V_SIG}, s{S_T0}, v{t0}')
    a(f's_lshl_b32 s{S_T0}, s{S_MT}, 2')
    a(f's_add_u32 s{S_T0}, s{S_T0}, s{S_W}')
    a(f's_mul_i32 s{S_A2}, s{S_T0}, {RB_STRIDE}')
    lre, lim, ldt = t5, t6, t7
    a(f'v_lshlrev_b32 v{lre}, 16, v{lre}')
    a(f'v_lshlrev_b32 v{lim}, 16, v{lim}')
    a(f'v_lshlrev_b32 v{ldt}, 16, v{ldt}')
    a(f'v_mul_f32 v{ldt}, {f32(math.log2(math.e))}, v{ldt}')
    a(f'v_exp_f32 v{ldt}, v{ldt}')
    bf16r(a, ldt, ldt)
    zl, zv = t3, t4
    a(f'v_mul_f32 v{zl}, v{ldt}, v{lre}')
    a(f'v_mul_f32 v{zv}, v{ldt}, v{lim}')
    a(f'v_mul_f32 v{zl}, {f32(math.log2(math.e))}, v{zl}')
    a(f'v_mul_f32 v{zv}, {f32(1/(2*math.pi))}, v{zv}')
    cexp(a, P_AR, P_AI, zl, zv, '1.0', t0, t1)
    cexp(a, P_A16R, P_A16I, zl, zv, f32(16.0), t0, t1)
    cexp(a, P_A128R, P_A128I, zl, zv, f32(128.0), t0, t1)
    cexp(a, P_A256R, P_A256I, zl, zv, f32(256.0), t0, t1)
    a(f'v_lshlrev_b32 v{t2}, 4, v{V_SIG}')
    a(f'v_cvt_f32_u32 v{t2}, v{t2}')
    cexp(a, P_PWR, P_PWI, zl, zv, f'v{t2}', t0, t1)
    a(f'v_mul_f32 v{t0}, v{lre}, v{lre}')
    a(f'v_fma_f32 v{t0}, v{lim}, v{lim}, v{t0}')
    a(f'v_rcp_f32 v{t0}, v{t0}')
    a(f'v_add_f32 v{t1}, -1.0, v{P_AR}')
    a(f'v_add_f32 v{t0}, v{t0}, v{t0}')
    a(f'v_mul_f32 v{P_KR}, v{t1}, v{lre}')
    a(f'v_fma_f32 v{P_KR}, -v{P_AI}, v{lim}, v{P_KR}')
    a(f'v_mul_f32 v{P_KI}, -v{P_AI}, v{lre}')
    a(f'v_fma_f32 v{P_KI}, -v{t1}, v{lim}, v{P_KI}')
    a(f'v_mul_f32 v{P_KR}, v{P_KR}, v{t0}')
    a(f'v_mul_f32 v{P_KI}, v{P_KI}, v{t0}')
    a(f'v_lshlrev_b32 v{T+8}, 16, v{T+8}')
    a(f'v_add_u32 v{T+9}, {B1T}, v{T+9}')
    a(f'ds_write_b32 v{T+9}, v{T+8}')
    a(f'v_readfirstlane_b32 s{S_TAG}, v{T+10}')
    a(f'v_readfirstlane_b32 s{S_TAG+1}, v{T+11}')
    a(f's_mul_i32 s{S_TAG}, s{S_TAG}, 0x0019660d')
    a(f's_add_u32 s{S_TAG}, s{S_TAG}, 0x3c6ef35f')
    a(f's_mul_i32 s{S_TAG+1}, s{S_TAG+1}, 0x41c64e6d')
    a(f's_add_u32 s{S_TAG+1}, s{S_TAG+1}, 0x00003039')

def interleave(a, mf, others, per=2):
    others = list(others)
    n = len(mf)
    for i, m in enumerate(mf):
        a(m)
        k = -(-len(others) // (n - i))
        k = min(len(others), max(k, per))
        for _ in range(k): a(others.pop(0))
    for o in others: a(o)

def stage1_loop(a):
    a('@wait dma0')
    a('@waitds')
    a('s_barrier')
    for r in frag_reads(0, 0): a(r)
    for kc in range(8):
        for s in range(4):
            mf = step_mfmas(kc, s)
            if s < 3:
                interleave(a, mf, frag_reads(kc, s + 1))
            else:
                if kc == 7:
                    for m in mf: a(m)
                    continue
                a('@waitds')
                a(mf[0]); a(mf[1])
                a(f'@wait dma{kc+1}')
                a('s_barrier')
                interleave(a, mf[2:5], frag_reads(kc + 1, 0), per=4)
                if kc + 4 < 8: dma_chunk(a, kc + 4)
                for m in mf[5:]: a(m)

def stage1_epilogue(a, fused=False):
    L = V_LANE
    t = list(range(T, T + 32))
    a(f'v_and_b32 v{t[0]}, 31, v{L}')
    a(f'v_lshlrev_b32 v{V_I4}, 4, v{t[0]}')
    a(f's_lshl_b32 s{S_T0}, s{S_W}, 2')
    a(f's_add_u32 s{S_T0}, s{S_T0}, {CSX}')
    a(f'v_add_u32 v{t[1]}, s{S_T0}, v{V_I4}')
    for b in range(5):
        a(f'ds_write_b32 v{t[1]}, v{CS+4*b} offset:{b*512}')
    for hh in range(2):
        g = GR[hh]
        a(f'v_cndmask_b32 v{t[2]}, v{g}, v{g+1}, s[{S_M1}:{S_M1+1}]')
        a(f'v_cndmask_b32 v{t[3]}, v{g+2}, v{g+3}, s[{S_M1}:{S_M1+1}]')
        a(f'v_cndmask_b32 v{t[4+hh]}, v{t[2]}, v{t[3]}, s[{S_M2}:{S_M2+1}]')
    a(f'v_and_b32 v{t[2]}, 15, v{L}')
    a(f'v_bfe_u32 v{t[3]}, v{L}, 2, 2')
    a(f'v_lshl_add_u32 v{t[2]}, v{t[3]}, 4, v{t[2]}')
    a(f'v_lshlrev_b32 v{t[2]}, 2, v{t[2]}')
    a(f'ds_bpermute_b32 v{t[4]}, v{t[2]}, v{t[4]}')
    a(f'ds_bpermute_b32 v{t[5]}, v{t[2]}, v{t[5]}')
    mean, var, mb, d, rinv, rho, nrm = t[6], t[7], t[8], t[9+1], t[9], t[11], t[12]
    a(f'v_mul_f32 v{mean}, {f32(1/512)}, v{RS}')
    a(f'v_cndmask_b32 v{var}, v{t[4]}, v{t[5]}, s[{S_M16}:{S_M16+1}]')
    a(f'v_mul_f32 v{var}, {f32(1/512)}, v{var}')
    a(f'v_fma_f32 v{var}, -v{mean}, v{mean}, v{var}')
    a(f'v_max_f32 v{var}, 0, v{var}')
    bf16r(a, mb, mean)
    bf16r(a, d, var)
    a(f'v_add_f32 v{d}, {f32(1e-5)}, v{d}')
    bf16r(a, d, d)
    a(f'v_sqrt_f32 v{d}, v{d}')
    bf16r(a, d, d)
    a(f'v_rcp_f32 v{rinv}, v{d}')
    a(f'v_sub_f32 v{t[2]}, v{mean}, v{mb}')
    a(f'v_mul_f32 v{t[2]}, v{t[2]}, v{rinv}')
    a(f'v_mul_f32 v{t[3]}, v{var}, v{rinv}')
    a(f'v_mul_f32 v{t[3]}, v{t[3]}, v{rinv}')
    bf16r(a, t[2], t[2])
    bf16r(a, t[3], t[3])
    a(f'v_add_f32 v{t[3]}, {f32(1e-5)}, v{t[3]}')
    bf16r(a, t[3], t[3])
    a(f'v_sqrt_f32 v{t[3]}, v{t[3]}')
    bf16r(a, t[3], t[3])
    a(f'v_rcp_f32 v{t[3]}, v{t[3]}')
    a(f'v_fma_f32 v{t[2]}, v{t[2]}, v{d}, v{mb}')
    a(f'v_mul_f32 v{rho}, v{rinv}, v{t[3]}')
    a(f'v_mul_f32 v{nrm}, -v{rho}, v{t[2]}')
    a(f's_lshl_b32 s{S_T0}, s{S_W}, 8')
    a(f's_add_u32 s{S_T0}, s{S_T0}, {STT}')
    a(f'v_lshl_add_u32 v{t[2]}, v{V_TAU}, 2, s{S_T0}')
    a(f'ds_write_b32 v{t[2]}, v{mb}')
    a(f'ds_write_b32 v{t[2]}, v{rinv} offset:128')
    a(f's_lshr_b32 s{S_T1}, s{S_XB}, 7')
    a(f's_add_u32 s{S_T1}, s{S_T1}, {STATS_OFF}')
    a(f'v_lshlrev_b32 v{t[3]}, 3, v{V_TAU}')
    a(f'buffer_store_dwordx2 {vr(mb,2)}, v{t[3]}, {srd(SRD_WS)}, s{S_T1} offen sc1')
    a('@waitds')
    a('s_barrier')
    a(f'v_add_u32 v{t[2]}, {CSX}, v{V_I4}')
    a(f'v_add_u32 v{t[3]}, {CSX+64*16}, v{V_L16}')
    c0, c1, c2, c3 = 80, 84, 88, 92
    a(f'ds_read_b128 {vr(c0,4)}, v{t[2]}')
    a(f'ds_read_b128 {vr(c1,4)}, v{t[2]} offset:512')
    a(f'ds_read_b128 {vr(c2,4)}, v{t[3]}')
    a(f'ds_read_b128 {vr(c3,4)}, v{t[2]} offset:2048')
    a(f'v_lshrrev_b32 v{t[4]}, 5, v{L}')
    a(f'v_lshl_add_u32 v{t[4]}, v{t[4]}, 6, s{S_T0}')
    for q in range(4):
        a(f'ds_read_b128 {vr(48+4*q,4)}, v{t[4]} offset:{q*16}')
    for q in range(4):
        a(f'ds_read_b128 {vr(64+4*q,4)}, v{t[4]} offset:{128+q*16}')
    for c in (c0, c1, c2, c3):
        a(f'v_add_f32 v{c}, v{c}, v{c+1}')
        a(f'v_add_f32 v{c+2}, v{c+2}, v{c+3}')
        a(f'v_add_f32 v{c}, v{c}, v{c+2}')
    a(f's_mul_i32 s{S_T1}, s{S_W}, 384')
    a(f's_add_u32 s{S_T1}, s{S_T1}, {SMT}')
    a(f'v_lshl_add_u32 v{t[2]}, v{L}, 2, s{S_T1}')
    a(f'v_lshl_add_u32 v{t[3]}, v{t[0]}, 2, s{S_T1}')
    a(f'ds_write_b32 v{t[2]}, v{c2}')
    a(f'ds_write_b32 v{t[3]}, v{c3} offset:256')
    S1, S2 = t[13], t[14]
    a(f'v_mul_f32 v{S1}, v{P_KR}, v{c0}')
    a(f'v_fma_f32 v{S1}, -v{P_KI}, v{c1}, v{S1}')
    a(f'v_mul_f32 v{S2}, v{P_KR}, v{c1}')
    a(f'v_fma_f32 v{S2}, v{P_KI}, v{c0}, v{S2}')
    AS, AB = t[15], t[16]
    a(f'v_lshrrev_b32 v{t[4]}, 5, v{L}')
    a(f'v_lshl_add_u32 v{AS}, v{t[4]}, 4, s{S_T1}')
    a(f'v_lshlrev_b32 v{AB}, 4, v{t[4]}')
    a(f'v_add_u32 v{AB}, {B1T}, v{AB}')
    er, ei, nr, ni = t[18], t[19], t[20], t[21]
    for r in range(16):
        u1, u2 = t[2 + 2*(r & 1)], t[3 + 2*(r & 1)]
        a(f'v_mul_f32 v{u1}, v{P_KR}, v{DRE+r}')
        a(f'v_mul_f32 v{u2}, -v{P_KR}, v{DIM+r}')
        a(f'v_fma_f32 v{u1}, -v{P_KI}, v{DIM+r}, v{u1}')
        a(f'v_fma_f32 v{u2}, -v{P_KI}, v{DRE+r}, v{u2}')
        a(f'v_fma_f32 v{u1}, -v{48+r}, v{S1}, v{u1}')
        a(f'v_fma_f32 v{u2}, v{48+r}, v{S2}, v{u2}')
        a(f'v_mul_f32 v{DRE+r}, v{u1}, v{64+r}')
        a(f'v_mul_f32 v{DIM+r}, v{u2}, v{64+r}')
        if r == 0:
            pr, pi = DRE, DIM
        else:
            cr, ci = (er, ei) if (r & 1) else (nr, ni)
            a(f'v_fma_f32 v{cr}, v{P_AR}, v{pr}, v{DRE+r}')
            a(f'v_fma_f32 v{ci}, v{P_AR}, v{pi}, v{DIM+r}')
            a(f'v_fma_f32 v{cr}, -v{P_AI}, v{pi}, v{cr}')
            a(f'v_fma_f32 v{ci}, v{P_AI}, v{pr}, v{ci}')
            pr, pi = cr, ci
    assert (pr, pi) == (er, ei)
    a(f'v_lshlrev_b32 v{t[2]}, 3, v{t[0]}')
    a(f'v_add_u32 v{t[2]}, {SEG}, v{t[2]}')
    a(f'v_lshl_add_u32 v{t[3]}, v{V_SIG}, 8, v{t[2]}')
    a(f'ds_write_b64 v{t[3]}, {vr(er,2)}')
    a('@waitds')
    a('s_barrier')
    for j in range(8):
        a(f'ds_read_b64 {vr(48+2*j,2)}, v{t[2]} offset:{j*256}')
    LCR, LCI = t[22], t[23]
    a(f'v_mov_b32 v{LCR}, 0\nv_mov_b32 v{LCI}, 0')
    for j in range(8):
        e = 48 + 2*j
        if j > 0:
            pe = e - 2
            a(f'v_cmp_eq_u32 vcc, {j}, v{V_SIG}')
            a(f'v_fma_f32 v{e}, v{P_A16R}, v{pe}, v{e}')
            a(f'v_fma_f32 v{e+1}, v{P_A16R}, v{pe+1}, v{e+1}')
            a(f'v_cndmask_b32 v{LCR}, v{LCR}, v{pe}, vcc')
            a(f'v_cndmask_b32 v{LCI}, v{LCI}, v{pe+1}, vcc')
            a(f'v_fma_f32 v{e}, -v{P_A16I}, v{pe+1}, v{e}')
            a(f'v_fma_f32 v{e+1}, v{P_A16I}, v{pe}, v{e+1}')
    a(f'v_mov_b32 v64, v62\nv_mov_b32 v65, v63\nv_mov_b32 v66, s{S_TAG}\nv_mov_b32 v67, s{S_TAG+1}')
    a(f's_lshl_b32 s{S_T0}, s{S_G}, 4')
    a(f's_add_u32 s{S_T0}, s{S_T0}, s{S_MT}')
    a(f's_lshl_b32 s{S_T0}, s{S_T0}, 9')
    a(f's_add_u32 s{S_T3}, s{S_T0}, {CARRY_OFF}')
    a(f's_lshl_b32 s{S_T1}, s{S_W}, 3')
    a(f's_lshl_b32 s{S_EX}, 0xff, s{S_T1}')
    a(f's_mov_b32 s{S_EX+1}, 0')
    a(f's_mov_b64 exec, s[{S_EX}:{S_EX+1}]')
    a(f'buffer_store_dwordx4 {vr(64,4)}, v{V_I4}, {srd(SRD_WS)}, s{S_T3} offen sc1')
    a('s_mov_b64 exec, -1')
    c1 = -2.0 * math.sqrt(2.0 / math.pi) * math.log2(math.e)
    c2 = c1 * 0.044715
    a(f's_mov_b32 s{S_T1}, {f32(c2)}')
    GA = 100
    def gather_issue():
        a(f'v_lshrrev_b32 v{t[2]}, 5, v{L}')
        a(f'v_lshlrev_b32 v{t[2]}, 9, v{t[2]}')
        a(f'v_sub_u32 v{t[24]}, v{V_I4}, v{t[2]}')
        a(f'v_add_u32 v{t[24]}, 512, v{t[24]}')
        a(f's_sub_u32 s{S_T2}, s{S_T3}, {8192}')
        a(f's_add_u32 s{S_T0}, s{S_T2}, 4096')
        for j in range(8):
            off = 7168 - 1024*j
            sreg = S_T0 if off >= 4096 else S_T2
            a(f'buffer_load_dwordx4 {vr(GA+4*j,4)}, v{t[24]}, {srd(SRD_WS)}, s{sreg} offen offset:{off & 4095} sc1')
    for b in range(3):
        D = DM[b]
        for q in range(4):
            a(f'ds_read_b128 {vr(48+4*q,4)}, v{AS} offset:{b*128 + q*32}')
            a(f'ds_read_b128 {vr(64+4*q,4)}, v{AB} offset:{b*128 + q*32}')
        if b == 2: gather_issue()
        a(f'v_mov_b32 v{t[25]}, {f32(c1)}')
        for r0 in range(0, 16, 4):
            rs = range(r0, r0 + 4)
            for r in rs: a(f'v_fma_f32 v{48+r}, v{nrm}, v{48+r}, v{64+r}')
            for r in rs: a(f'v_fma_f32 v{D+r}, v{rho}, v{D+r}, v{48+r}')
            for r in rs: a(f'v_mul_f32 v{48+r}, v{D+r}, v{D+r}')
            for r in rs: a(f'v_fma_f32 v{48+r}, v{48+r}, s{S_T1}, v{t[25]}')
            for r in rs: a(f'v_mul_f32 v{48+r}, v{48+r}, v{D+r}')
            for r in rs: a(f'v_exp_f32 v{48+r}, v{48+r}')
            for r in rs: a(f'v_add_f32 v{48+r}, 1.0, v{48+r}')
            for r in rs: a(f'v_rcp_f32 v{48+r}, v{48+r}')
            for r in rs: a(f'v_mul_f32 v{D+r}, v{D+r}, v{48+r}')
            a(f'v_cvt_pk_bf16_f32 v{80+r0//2}, v{D+r0}, v{D+r0+1}')
            a(f'v_cvt_pk_bf16_f32 v{81+r0//2}, v{D+r0+2}, v{D+r0+3}')
        a(f's_add_u32 s{S_EX}, s{S_BLK0}, {b}')
        a(f's_mul_i32 s{S_EX+1}, s{S_G}, 3')
        a(f's_cmp_ge_u32 s{S_EX}, s{S_EX+1}')
        a(f's_lshl_b32 s{S_EX}, s{S_EX}, 11')
        a(f's_add_u32 s{S_EX}, s{S_EX}, s{S_A2}')
        a(f's_add_u32 s{S_EX}, s{S_EX}, {64*1024}')
        a(f's_add_u32 s{S_ROT}, s{S_BLK0}, {b}')
        a(f's_cmp_ge_u32 s{S_ROT}, s{S_EX+1}')
        a(f's_cselect_b32 s{S_EX}, s{S_EX}, {DUMMY_OFF}')
        a(f'buffer_store_dwordx4 {vr(80,4)}, v{V_L16}, {srd(SRD_WS)}, s{S_EX} offen sc1')
        a(f'buffer_store_dwordx4 {vr(84,4)}, v{V_L16}, {srd(SRD_WS)}, s{S_EX} offen offset:1024 sc1')
    mm = t[26]
    a(f'v_lshrrev_b32 v{t[2]}, 5, v{L}')
    a(f's_sub_u32 s{S_EX}, s{S_MT}, 1')
    a(f'v_sub_u32 v{mm}, s{S_EX}, v{t[2]}')
    def check():
        a(f'v_mov_b32 v{t[3]}, 0')
        for j in range(8):
            g = GA + 4*j
            a(f'v_xor_b32 v{t[4]}, s{S_TAG}, v{g+2}')
            a(f'v_xor_b32 v{t[5]}, s{S_TAG+1}, v{g+3}')
            a(f'v_cmp_le_i32 vcc, {2*j}, v{mm}')
            a(f'v_or_b32 v{t[4]}, v{t[4]}, v{t[5]}')
            a(f'v_cndmask_b32 v{t[4]}, 0, v{t[4]}, vcc')
            a(f'v_cndmask_b32 v{g}, 0, v{g}, vcc')
            a(f'v_cndmask_b32 v{g+1}, 0, v{g+1}, vcc')
            a(f'v_or_b32 v{t[3]}, v{t[3]}, v{t[4]}')
        a(f'v_cmp_ne_u32 vcc, 0, v{t[3]}')
    a(f's_mov_b32 s{S_ROT}, 0')
    a(f'@waitregs {vr(GA,32)}')
    a('L_carry_retry:')
    check()
    a('s_nop 4')
    a('s_cbranch_vccz L_carry_ok')
    a('@raw')
    a('s_sleep 2')
    for j in range(8):
        off = 7168 - 1024*j
        sreg = S_T0 if off >= 4096 else S_T2
        a(f'buffer_load_dwordx4 {vr(GA+4*j,4)}, v{t[24]}, {srd(SRD_WS)}, s{sreg} offen offset:{off & 4095} sc1')
    a(f's_add_u32 s{S_ROT}, s{S_ROT}, 1')
    a(f's_cmp_lt_u32 s{S_ROT}, 20000')
    a('s_waitcnt vmcnt(0)')
    a('s_cbranch_scc1 L_carry_retry')
    a('@endraw')
    a('L_carry_ok:')
    for j in range(6, -1, -1):
        g = GA + 4*j; pg = g + 4
        a(f'v_fma_f32 v{g}, v{P_A256R}, v{pg}, v{g}')
        a(f'v_fma_f32 v{g+1}, v{P_A256R}, v{pg+1}, v{g+1}')
        a(f'v_fma_f32 v{g}, -v{P_A256I}, v{pg+1}, v{g}')
        a(f'v_fma_f32 v{g+1}, v{P_A256I}, v{pg}, v{g+1}')
    a(f'v_mov_b32 v{GA+2}, v{GA}\nv_mov_b32 v{GA+3}, v{GA+1}')
    a(f'v_permlane32_swap_b32 v{GA}, v{GA+2}')
    a(f'v_permlane32_swap_b32 v{GA+1}, v{GA+3}')
    a(f'v_fma_f32 v{GA}, v{P_A128R}, v{GA+2}, v{GA}')
    a(f'v_fma_f32 v{GA+1}, v{P_A128R}, v{GA+3}, v{GA+1}')
    a(f'v_fma_f32 v{GA}, -v{P_A128I}, v{GA+3}, v{GA}')
    a(f'v_fma_f32 v{GA+1}, v{P_A128I}, v{GA+2}, v{GA+1}')
    a(f'v_fma_f32 v{LCR}, v{P_PWR}, v{GA}, v{LCR}')
    a(f'v_fma_f32 v{LCI}, v{P_PWR}, v{GA+1}, v{LCI}')
    a(f'v_fma_f32 v{LCR}, -v{P_PWI}, v{GA+1}, v{LCR}')
    a(f'v_fma_f32 v{LCI}, v{P_PWI}, v{GA}, v{LCI}')
    pr, pi = LCR, LCI
    for r in range(16):
        a(f'v_fma_f32 v{DRE+r}, v{P_AR}, v{pr}, v{DRE+r}')
        a(f'v_fma_f32 v{DIM+r}, v{P_AR}, v{pi}, v{DIM+r}')
        a(f'v_fma_f32 v{DRE+r}, -v{P_AI}, v{pi}, v{DRE+r}')
        a(f'v_fma_f32 v{DIM+r}, v{P_AI}, v{pr}, v{DIM+r}')
        pr, pi = DRE + r, DIM + r
        if r & 1:
            a(f'v_cvt_pk_bf16_f32 v{48+r//2}, v{DRE+r-1}, v{DRE+r}')
            a(f'v_cvt_pk_bf16_f32 v{56+r//2}, v{DIM+r-1}, v{DIM+r}')
    a(f'v_lshrrev_b32 v{t[2]}, 5, v{L}')
    a(f'v_lshlrev_b32 v{t[2]}, 5, v{t[2]}')
    a(f'v_lshl_add_u32 v{t[2]}, v{V_TAU}, 6, v{t[2]}')
    a(f'v_add_u32 v{t[2]}, s{S_MX}, v{t[2]}')
    a(f'ds_write_b128 v{t[2]}, {vr(48,4)}')
    a(f'ds_write_b128 v{t[2]}, {vr(52,4)} offset:16')
    a(f'ds_write_b128 v{t[2]}, {vr(56,4)} offset:2048')
    a(f'ds_write_b128 v{t[2]}, {vr(60,4)} offset:2064')
    a(f'v_lshrrev_b32 v{t[3]}, 5, v{L}')
    a(f'v_bfe_u32 v{t[4]}, v{L}, 2, 2')
    a(f'v_lshl_add_u32 v{t[3]}, v{t[3]}, 3, v{t[4]}')
    a(f'v_lshlrev_b32 v{t[3]}, 6, v{t[3]}')
    a(f'v_and_b32 v{t[4]}, 1, v{L}')
    a(f'v_lshl_add_u32 v{t[3]}, v{t[4]}, 5, v{t[3]}')
    a(f'v_bfe_u32 v{t[4]}, v{L}, 4, 1')
    a(f'v_lshl_add_u32 v{t[3]}, v{t[4]}, 4, v{t[3]}')
    a(f'v_bfe_u32 v{t[4]}, v{L}, 1, 1')
    a(f'v_lshl_add_u32 v{t[3]}, v{t[4]}, 3, v{t[3]}')
    a(f'v_add_u32 v{t[3]}, s{S_MX}, v{t[3]}')
    a('@waitds')
    for part in range(2):
        for k in range(2):
            for u in range(2):
                a(f'ds_read_b64_tr_b16 {vr(64+part*8+k*4+u*2,2)}, v{t[3]} offset:{part*2048 + k*1024 + u*256}')
    a(f's_lshl_b32 s{S_T0}, s{S_G}, 11')
    a(f's_add_u32 s{S_T0}, s{S_T0}, s{S_A2}')
    a(f's_add_u32 s{S_T1}, s{S_T0}, {32*1024}')
    for part in range(2):
        for k in range(2):
            a(f'buffer_store_dwordx4 {vr(64+part*8+k*4,4)}, v{V_L16}, {srd(SRD_WS)}, s{S_T1 if part else S_T0} offen offset:{k*1024} sc1')
    if not fused:
        a('s_barrier')
        a(f's_cmp_eq_u32 s{S_MT}, 15')
        a('s_cbranch_scc0 L_k1_done')
        a(f's_lshl_b32 s{S_T0}, s{S_G}, 7')
        a(f's_add_u32 s{S_T0}, s{S_T0}, {EPOCH_OFF}')
        a(f'v_mov_b32 v{t[2]}, s{S_TAG}\nv_mov_b32 v{t[3]}, s{S_TAG+1}\nv_mov_b32 v{t[4]}, 0')
        a(f'buffer_store_dwordx2 {vr(t[2],2)}, v{t[4]}, {srd(SRD_WS)}, s{S_T0} offen sc1')
        a('L_k1_done:')


S_RT, S_CT = 3, 4
S_SA = (40, 41)
S_REG = 44
V2 = 8
AC = 12
AT = 16
RING = 48; RING_N = 12
ACC = 144; BV = 208
SEQ = [('m', n) for n in range(20)] + [('r', n) for n in range(8)] + [('i', n) for n in range(8)] + [('m', 20), ('m', 21)]
def breg(p, cb):
    if p < 32: return 'a', 8*p + 4*cb
    return 'v', BV + 8*(p-32) + 4*cb
def rr(k, b, n): return f'{k}[{b}:{b+n-1}]'

def ids2(a):
    a(f's_and_b32 s{S_T0}, s2, 7')
    a(f's_lshr_b32 s{S_T1}, s2, 3')
    a(f's_lshl_b32 s{S_RT}, s{S_T0}, 2')
    a(f's_and_b32 s{S_T2}, s{S_T1}, 3')
    a(f's_add_u32 s{S_RT}, s{S_RT}, s{S_T2}')
    a(f's_lshr_b32 s{S_CT}, s{S_T1}, 2')

def stage2_setup(a, region_stride):
    L = V_LANE
    t0, t1, t2, t3 = 20, 21, 22, 23
    mk_srd(a, SRD_CRE, 'cre'); mk_srd(a, SRD_CIM, 'cim'); mk_srd(a, SRD_W2, 'w2'); mk_srd(a, SRD_OUT, 'out')
    a(f's_mul_i32 s{S_REG}, s{S_W}, {region_stride}')
    a(f'v_lshrrev_b32 v{t0}, 3, v{L}')
    a(f'v_lshlrev_b32 v{t0}, 10, v{t0}')
    a(f'v_bfe_u32 v{t1}, v{L}, 4, 1')
    a(f'v_lshlrev_b32 v{t1}, 2, v{t1}')
    a(f'v_and_b32 v{t2}, 7, v{L}')
    a(f'v_xor_b32 v{t1}, v{t1}, v{t2}')
    a(f'v_lshl_add_u32 v{V2}, v{t1}, 4, v{t0}')
    for e in range(1, 4):
        a(f'v_add_u32 v{V2+e}, {e*7168}, v{V2}')
    a(f'v_and_b32 v{t0}, 31, v{L}')
    a(f'v_lshlrev_b32 v{t0}, 7, v{t0}')
    a(f'v_add_u32 v{t0}, s{S_REG}, v{t0}')
    a(f'v_bfe_u32 v{t1}, v{L}, 1, 3')
    a(f'v_lshrrev_b32 v{t2}, 5, v{L}')
    a(f'v_xor_b32 v{t1}, v{t1}, v{t2}')
    for s in range(4):
        a(f'v_xor_b32 v{t2}, {2*s}, v{t1}')
        a(f'v_lshl_add_u32 v{AC+s}, v{t2}, 4, v{t0}')
    a(f'v_lshrrev_b32 v{t0}, 5, v{L}')
    a(f'v_bfe_u32 v{t1}, v{L}, 2, 2')
    a(f'v_lshl_add_u32 v{t0}, v{t0}, 2, v{t1}')
    a(f'v_lshlrev_b32 v{t0}, 7, v{t0}')
    a(f'v_and_b32 v{t1}, 1, v{L}')
    a(f'v_lshl_add_u32 v{t0}, v{t1}, 5, v{t0}')
    a(f'v_bfe_u32 v{t1}, v{L}, 4, 1')
    a(f'v_lshl_add_u32 v{t0}, v{t1}, 4, v{t0}')
    a(f'v_bfe_u32 v{t1}, v{L}, 1, 1')
    a(f'v_lshl_add_u32 v{t0}, v{t1}, 3, v{t0}')
    a(f'v_add_u32 v{t0}, s{S_REG}, v{t0}')
    a(f'v_bfe_u32 v{t1}, v{L}, 3, 1')
    a(f's_and_b32 s{S_T0}, s{S_W}, 1')
    a(f'v_xor_b32 v{t1}, s{S_T0}, v{t1}')
    a(f'v_lshl_add_u32 v{AT}, v{t1}, 6, v{t0}')
    a(f'v_xor_b32 v{t1}, 1, v{t1}')
    a(f'v_lshl_add_u32 v{AT+1}, v{t1}, 6, v{t0}')
    a(f's_lshr_b32 s{S_T0}, s{S_W}, 1')
    a(f's_lshl_b32 s{S_T1}, s{S_RT}, 1')
    a(f's_add_u32 s{S_T1}, s{S_T1}, s{S_T0}')
    a(f's_mul_i32 s{S_SA[0]}, s{S_T1}, {RB_STRIDE}')
    a(f's_xor_b32 s{S_T1}, s{S_T1}, 1')
    a(f's_mul_i32 s{S_SA[1]}, s{S_T1}, {RB_STRIDE}')

def c_unit_dma(a, part, kh, cbp, ldsoff, tag=None):
    a(f's_and_b32 s{S_T0}, s{S_W}, 1')
    if cbp: a(f's_xor_b32 s{S_T0}, s{S_T0}, 1')
    a(f's_lshl_b32 s{S_T1}, s{S_CT}, 1')
    a(f's_add_u32 s{S_T0}, s{S_T0}, s{S_T1}')
    a(f's_lshl_b32 s{S_T0}, s{S_T0}, 15')
    a(f's_lshl_b32 s{S_T1}, s{S_W}, 8')
    a(f's_add_u32 s{S_T0}, s{S_T0}, s{S_T1}')
    if kh: a(f's_add_u32 s{S_T0}, s{S_T0}, 128')
    a(f's_add_u32 m0, s{S_REG}, {ldsoff}')
    for q in range(4):
        a(f'buffer_load_dwordx4 v{VX+q}, {srd(SRD_CIM if part else SRD_CRE)}, s{S_T0} offen offset:{q*1024} lds' + (f' ;@id={tag}' if q == 3 and tag else ''))

def c_unit_read(a, part, kh, cbp, ldsoff):
    for s in range(4):
        p = SEQ.index(('i' if part else 'r', 4*kh + s))
        k, b = breg(p, cbp)
        a(f'ds_read_b128 {rr(k,b,4)}, v{AC+s} offset:{ldsoff}')

def w2_pair_dma(a, n, ldsoff, tag=None):
    a(f's_mul_i32 s{S_T0}, s{S_W}, {22*16*1024}')
    a(f's_lshl_b32 s{S_T1}, s{S_CT}, 7')
    a(f's_add_u32 s{S_T0}, s{S_T0}, s{S_T1}')
    a(f's_add_u32 s{S_T0}, s{S_T0}, {n*16*1024}')
    a(f's_add_u32 m0, s{S_REG}, {ldsoff}')
    for e in range(4):
        a(f'buffer_load_dwordx4 v{V2+e}, {srd(SRD_W2)}, s{S_T0} offen offset:{e*1024} lds' + (f' ;@id={tag}' if e == 3 and tag else ''))

def w2_pair_read(a, n, ldsoff):
    for j in range(2):
        p = SEQ.index(('m', n + j))
        for cbp in range(2):
            k, b = breg(p, cbp)
            for u in range(2):
                a(f'ds_read_b64_tr_b16 {rr(k,b+2*u,2)}, v{AT+cbp} offset:{ldsoff + j*2048 + u*1024}')

S_KS = (45, 46)
def a_load(a, p, sc=''):
    kind, n = SEQ[p]
    slot = RING + 8*(p % RING_N)
    newbase = (p == 0) or (SEQ[p-1][0] != kind) or (n & 3) == 0
    if newbase:
        base = {'m': 64, 'r': 0, 'i': 32}[kind]; mul = 22 if kind == 'm' else 8
        a(f's_mul_i32 s{S_T0}, s{S_W}, {mul*1024}')
        a(f's_add_u32 s{S_T0}, s{S_T0}, {(base + (n & ~3))*1024}')
        a(f's_add_u32 s{S_KS[0]}, s{S_T0}, s{S_SA[0]}')
        a(f's_add_u32 s{S_KS[1]}, s{S_T0}, s{S_SA[1]}')
    for rb in range(2):
        a(f'buffer_load_dwordx4 {vr(slot+4*rb,4)}, v{V_L16}, {srd(SRD_WS)}, s{S_KS[rb]} offen offset:{(n&3)*1024}{sc}')

def stage2_main(a, sc=''):
    for p in range(38):
        slot = RING + 8*(p % RING_N)
        if p == 36:
            a(f'@waitregs {vr(RING, 96)}')
            a('@waitds')
            a(f's_cmp_eq_u32 s{S_W}, 3')
            a('s_cbranch_scc1 L_skip_tail')
        for rb in range(2):
            for cb in range(2):
                k, b = breg(p, cb)
                acc = ACC + 16*(2*rb + cb)
                a(f'v_mfma_f32_32x32x16_bf16 {vr(acc,16)}, {vr(slot+4*rb,4)}, {rr(k,b,4)}, ' + ('0' if p == 0 else vr(acc,16)))
        if p + RING_N < 38: a_load(a, p + RING_N, sc)
    a('L_skip_tail:')

def stage2_final(a, red_base, sc=''):
    L = V_LANE
    t0, t1, t2, t3 = 20, 21, 22, 23
    XV = 48; ST = 64; DS_, B2 = 96, 97; RD = 100
    a(f's_lshr_b32 s{S_T0}, s{S_W}, 1')
    a(f's_lshl_b32 s{S_T1}, s{S_RT}, 1')
    a(f's_add_u32 s{S_T0}, s{S_T0}, s{S_T1}')
    a(f's_and_b32 s{S_T1}, s{S_W}, 1')
    a(f's_lshl_b32 s{S_T2}, s{S_CT}, 1')
    a(f's_add_u32 s{S_T1}, s{S_T1}, s{S_T2}')
    a(f's_lshl_b32 s{S_T1}, s{S_T1}, 6')
    a(f's_lshl_b32 s{S_T2}, s{S_T0}, 15')
    a(f's_add_u32 s{S_T2}, s{S_T2}, s{S_T1}')
    a(f'v_lshrrev_b32 v{t0}, 5, v{L}')
    a(f'v_lshlrev_b32 v{t1}, 14, v{t0}')
    a(f'v_lshl_add_u32 v{t1}, v{V_TAU}, 1, v{t1}')
    for r in range(16):
        if r & 3 == 0: a(f's_add_u32 s{S_T3}, s{S_T2}, {r*1024}')
        a(f'buffer_load_ushort v{XV+r}, v{t1}, {srd(SRD_X)}, s{S_T3} offen offset:{(r&3)*1024}')
    a(f's_lshl_b32 s{S_T3}, s{S_T0}, 8')
    a(f's_add_u32 s{S_T3}, s{S_T3}, {STATS_OFF}')
    a(f'v_lshlrev_b32 v{t2}, 7, v{t0}')
    for q in range(8):
        a(f'buffer_load_dwordx4 {vr(ST+4*q,4)}, v{t2}, {srd(SRD_WS)}, s{S_T3} offen offset:{q*16}{sc}')
    a(f'v_lshl_add_u32 v{t3}, v{V_TAU}, 1, s{S_T1}')
    a(f'global_load_ushort v{DS_}, v{t3}, s[{kp("dskip")}:{kp("dskip")+1}]')
    a(f'global_load_ushort v{B2}, v{t3}, s[{kp("b2")}:{kp("b2")+1}]')
    a('s_barrier')
    for j in range(1, 4):
        a(f's_xor_b32 s{S_T3}, s{S_W}, {j}')
        a(f's_mul_i32 s{S_T3}, s{S_T3}, 12288')
        a(f's_add_u32 s{S_T3}, s{S_T3}, {red_base + (j-1)*4096}')
        a(f'v_add_u32 v{t2}, s{S_T3}, v{V_L16}')
        for q in range(4):
            a(f'ds_write_b128 v{t2}, {vr(ACC+16*j+4*q,4)} offset:{q*1024}')
    a(f'v_lshlrev_b32 v{DS_}, 16, v{DS_}')
    a(f'v_lshlrev_b32 v{B2}, 16, v{B2}')
    for r in range(16):
        a(f'v_lshlrev_b32 v{XV+r}, 16, v{XV+r}')
        a(f'v_sub_f32 v{ST+2*r}, v{XV+r}, v{ST+2*r}')
        a(f'v_add_f32 v{XV+r}, v{XV+r}, v{B2}')
        a(f'v_mul_f32 v{ST+2*r}, v{ST+2*r}, v{ST+2*r+1}')
        a(f'v_add_f32 v{ACC+r}, v{ACC+r}, v{XV+r}')
        a(f'v_fma_f32 v{ACC+r}, v{ST+2*r}, v{DS_}, v{ACC+r}')
    a(f's_mul_i32 s{S_T3}, s{S_W}, 12288')
    a(f's_add_u32 s{S_T3}, s{S_T3}, {red_base}')
    a(f'v_add_u32 v{t2}, s{S_T3}, v{V_L16}')
    a('@waitds')
    a('s_barrier')
    for q in range(4):
        for j in range(3):
            a(f'ds_read_b128 {vr(ACC+16+16*j+4*q,4)}, v{t2} offset:{j*4096 + q*1024}')
    a(f'v_lshlrev_b32 v{t1}, 1, v{t1}')
    a(f's_lshl_b32 s{S_T2}, s{S_T2}, 1')
    for r in range(16):
        a(f'v_add_f32 v{ACC+16+r}, v{ACC+16+r}, v{ACC+32+r}')
        a(f'v_add_f32 v{ACC+r}, v{ACC+r}, v{ACC+48+r}')
        a(f'v_add_f32 v{ACC+r}, v{ACC+r}, v{ACC+16+r}')
        if r & 1 == 0: a(f's_add_u32 s{S_T3}, s{S_T2}, {r*2048}')
        a(f'buffer_store_dword v{ACC+r}, v{t1}, {srd(SRD_OUT)}, s{S_T3} offen offset:{(r&1)*2048}')

def tau(a, t0, t1, t2):
    L = V_LANE
    a(f'v_bfe_u32 v{t0}, v{L}, 2, 1')
    a(f'v_bfe_u32 v{t1}, v{L}, 3, 2')
    a(f'v_and_b32 v{t2}, 3, v{L}')
    a(f'v_lshl_add_u32 v{t2}, v{t1}, 2, v{t2}')
    a(f'v_lshl_add_u32 v{V_TAU}, v{t0}, 4, v{t2}')

def gen_k2(name):
    a = Asm()
    a('s_cmp_ge_u32 s2, 256')
    a(f's_cbranch_scc1 L_{name}_end')
    load_kernargs(a)
    code_prefetch(a, 0, 2, 3, f'L_{name}_end-{name}-64')
    a(f'v_lshrrev_b32 v2, 6, v0')
    a(f'v_and_b32 v{V_LANE}, 63, v0')
    a(f'v_readfirstlane_b32 s{S_W}, v2')
    ids2(a)
    stage1_setup(a)
    tau(a, 20, 21, 22)
    a('s_waitcnt lgkmcnt(0)')
    mk_srd(a, SRD_X, 'x'); mk_srd(a, SRD_WS, 'ws')
    stage2_setup(a, 40960)
    for i in range(10): w2_pair_dma(a, 2*i, i*4096, f'w{i}')
    for p in range(6): a_load(a, p)
    units = [(part, kh, cb) for part in range(2) for kh in range(2) for cb in range(2)]
    for i in range(10):
        a(f'@wait w{i}')
        w2_pair_read(a, 2*i, i*4096)
        a('@waitds')
        if i < 8: c_unit_dma(a, *units[i], i*4096, f'c{i}')
        elif i == 8: w2_pair_dma(a, 20, i*4096, 'w10')
    for p in range(6, RING_N): a_load(a, p)
    for i in range(8):
        a(f'@wait c{i}')
        c_unit_read(a, *units[i], i*4096)
    a('@wait w10')
    w2_pair_read(a, 20, 8*4096)
    stage2_main(a)
    stage2_final(a, 0)
    a(f'L_{name}_end:')
    a('s_endpgm')
    return post.process(a.lines)

def gen_k1(name):
    a = Asm()
    a('s_cmp_ge_u32 s2, 256')
    a(f's_cbranch_scc1 L_{name}_end')
    load_kernargs(a)
    code_prefetch(a, 0, 2, 3, f'L_{name}_end-{name}-64')
    ids(a)
    stage1_setup(a)
    a('s_waitcnt lgkmcnt(0)')
    stage1_setup2(a)
    stage1_setup3a(a)
    for kc in range(4): dma_chunk(a, kc)
    stage1_setup3b(a)
    stage1_loop(a)
    stage1_epilogue(a)
    a(f'L_{name}_end:')
    a('s_endpgm')
    return post.process(a.lines)

if __name__ == '__main__':
    name = 'k1_kernel'
    body = gen_k1(name)
    s = header([(name, (256,1,1), (256,1,1), LDS_TOTAL)]) + kernel_begin(name) + '\n'.join(body) + '\n' + rodata_begin() + descriptor(name, 256, 102, 256)
    open('k1.s', 'w').write(s)
    b2 = gen_k2('k2_kernel')
    s = header([('k1_kernel', (256,1,1), (256,1,1), LDS_TOTAL), ('k2_kernel', (256,1,1), (256,1,1), LDS_TOTAL)])
    s += kernel_begin('k1_kernel') + '\n'.join(body) + '\n' + kernel_begin('k2_kernel') + '\n'.join(b2) + '\n'
    s += rodata_begin() + descriptor('k1_kernel', 256, 102, 256) + '.p2align 6\n' + descriptor('k2_kernel', 512, 102, 256)
    open('k12.s', 'w').write(s)
```

```python
import sys, math, struct, os
OPT = dict(x.split('=') for x in os.environ.get('OPT','').split(',') if x)
def opt(k, d): return type(d)(OPT.get(k, d))
from ag import *
import post

def f32(x): return '0x%08x' % struct.unpack('<I', struct.pack('<f', x))[0]

A2_OFF = 0
RB_STRIDE = 150 * 1024
STATS_OFF = 0xA00000
CARRY_OFF = 0xA10000 + 0x4000
DUMMY_OFF = 0xA40000
EPOCH_OFF = 0xA80000
FLAG_OFF = 0xB00000
TS_OFF = 0xC00000
X_BASE = 0; RI_BASE = 65536; W_BASE = 98304; MISC = 147456
CSX = MISC
B1T = MISC + 2560
STT = MISC + 3072
SMT = MISC + 4096
SEG = MISC + 5632
LDS_TOTAL = 163840

S_MT, S_G, S_W = 3, 4, 5
SRD_X, SRD_RI, SRD_W1, SRD_WS, SRD_CRE, SRD_CIM, SRD_W2, SRD_OUT = 8, 12, 16, 20, 24, 28, 32, 36
S_XB, S_RIB, S_WB, S_ROT = 40, 41, 42, 43
S_MX, S_MRI, S_MW = 44, 45, 46
S_T0, S_T1, S_T2, S_T3 = 47, 48, 49, 50
S_TAG = 52
S_M1, S_M2, S_M16 = 54, 56, 58
S_BLK0 = 60
S_A2 = 61
S_EX = 62
KA = 64
def kp(name):
    r = KA + KARG[name] // 4
    return r
def srd(r): return f's[{r}:{r+3}]'
def vr(a, n): return f'v[{a}:{a+n-1}]'
def ar(a, n): return f'a[{a}:{a+n-1}]'

def mk_srd(a, r, name):
    p = kp(name)
    a(f's_mov_b32 s{r}, s{p}\ns_mov_b32 s{r+1}, s{p+1}\ns_mov_b32 s{r+2}, {SIZES[name]}\ns_mov_b32 s{r+3}, 0x20000')

def load_kernargs(a):
    a(f's_load_dwordx16 s[{KA}:{KA+15}], s[0:1], 0')
    a(f's_load_dwordx16 s[{KA+16}:{KA+31}], s[0:1], 64')
    a(f's_load_dwordx2 s[{KA+32}:{KA+33}], s[0:1], 128')

def code_prefetch(a, nbytes, vtmp, vdst, label):
    a(f's_getpc_b64 s[6:7]')
    a(f'v_lshlrev_b32 v{vtmp}, 7, v0')
    a(f'v_min_u32 v{vtmp}, {label}, v{vtmp}')
    a(f'global_load_dword v{vdst}, v{vtmp}, s[6:7]')

TSON = False
V_TS = 46
def ts(a, idx):
    if not TSON: return
    a('@raw')
    a('s_memrealtime s[98:99]')
    a('s_waitcnt lgkmcnt(0)')
    a(f'v_writelane_b32 v{V_TS}, s98, {idx}')
    a('s_memtime s[98:99]')
    a('s_waitcnt lgkmcnt(0)')
    a(f'v_writelane_b32 v{V_TS}, s98, {idx+32}')
    a('@endraw')
def ts_init(a):
    if not TSON: return
    a(f'v_mov_b32 v{V_TS}, 0')
    ts(a, 0)
def ts_store(a, kidx):
    if not TSON: return
    a('s_waitcnt vmcnt(0)')
    ts(a, 31)
    a(f's_lshl_b32 s98, s2, 2')
    a(f's_add_u32 s98, s98, s{S_W}')
    a(f's_lshl_b32 s98, s98, 8')
    a(f's_add_u32 s98, s98, {TS_OFF + kidx*0x40000}')
    a(f'v_lshlrev_b32 v2, 2, v{V_LANE}')
    a(f'buffer_store_dword v{V_TS}, v2, {srd(SRD_WS)}, s98 offen')

V_LANE = 1
VX = 4; VW = 8; AX = 11; AR = 15; AW = 19; AG = 23
V_L16 = 25
V_I4 = 26
SEL = 28
P_AR, P_AI, P_KR, P_KI, P_A16R, P_A16I, P_A128R, P_A128I, P_A256R, P_A256I, P_PWR, P_PWI = range(32, 44)
V_TAU = 44
V_SIG = 45
F = (48, 72); G = (96, 100)
RS = 104; GR = (108, 112); CS = 116
DRE = 144; DIM = 160; DM = (176, 192, 208)
T = 224

def bf16r(a, d, s):
    a(f'v_cvt_pk_bf16_f32 v{d}, v{s}, v{s}')
    a(f'v_lshlrev_b32 v{d}, 16, v{d}')

def cexp(a, dr, di, zl, zrev, scale_reg_or_const, t0, t1):
    sc = scale_reg_or_const
    a(f'v_mul_f32 v{t0}, {sc}, v{zl}')
    a(f'v_mul_f32 v{t1}, {sc}, v{zrev}')
    a(f'v_exp_f32 v{t0}, v{t0}')
    a(f'v_fract_f32 v{t1}, v{t1}')
    a(f'v_cos_f32 v{dr}, v{t1}')
    a(f'v_sin_f32 v{di}, v{t1}')
    a(f'v_mul_f32 v{dr}, v{dr}, v{t0}')
    a(f'v_mul_f32 v{di}, -v{di}, v{t0}')

def ids(a):
    a(f'v_lshrrev_b32 v2, 6, v0')
    a(f'v_and_b32 v{V_LANE}, 63, v0')
    a(f'v_readfirstlane_b32 s{S_W}, v2')
    a(f's_and_b32 s{S_T0}, s2, 7')
    a(f's_lshr_b32 s{S_T1}, s2, 3')
    a(f's_and_b32 s{S_MT}, s{S_T0}, 1')
    a(f's_lshl_b32 s{S_MT}, s{S_MT}, 3')
    a(f's_and_b32 s{S_T2}, s{S_T1}, 7')
    a(f's_add_u32 s{S_MT}, s{S_MT}, s{S_T2}')
    a(f's_lshr_b32 s{S_G}, s{S_T0}, 1')
    a(f's_lshl_b32 s{S_G}, s{S_G}, 2')
    a(f's_lshr_b32 s{S_T2}, s{S_T1}, 3')
    a(f's_add_u32 s{S_G}, s{S_G}, s{S_T2}')

def dma_chunk(a, kc):
    slot = kc & 3
    a(f's_add_u32 s{S_T0}, s{S_ROT}, {kc}')
    a(f's_and_b32 s{S_T0}, s{S_T0}, 7')
    a(f's_lshl_b32 s{S_T1}, s{S_T0}, 7')
    a(f's_add_u32 m0, s{S_MX}, {slot*4096}')
    a(f's_add_u32 s{S_T2}, s{S_XB}, s{S_T1}')
    for q in range(4):
        a(f'buffer_load_dwordx4 v{VX+q}, {srd(SRD_X)}, s{S_T2} offen offset:{q*1024} lds')
    a(f's_add_u32 m0, s{S_MRI}, {slot*8192}')
    a(f's_add_u32 s{S_T2}, s{S_RIB}, s{S_T1}')
    for q in range(2):
        a(f'buffer_load_dwordx4 v{VX+q}, {srd(SRD_RI)}, s{S_T2} offen offset:{q*1024} lds')
    a(f's_mul_i32 s{S_T0}, s{S_T0}, {64*2752}')
    a(f's_add_u32 m0, s{S_MW}, {slot*12288}')
    a(f's_add_u32 s{S_T2}, s{S_WB}, s{S_T0}')
    for u in range(3):
        a(f'buffer_load_dwordx4 v{VW+u}, {srd(SRD_W1)}, s{S_T2} offen offset:{u*1024} lds' + (f' ;@id=dma{kc}' if u == 2 else ''))

def frag_reads(kc, s):
    slot = kc & 3; p = s & 1; f = F[p]
    r = []
    r.append(f'ds_read_b128 {vr(f,4)}, v{AX+s} offset:{slot*4096}')
    r.append(f'ds_read_b128 {vr(f+4,4)}, v{AR+s} offset:{slot*8192}')
    r.append(f'ds_read_b128 {vr(f+8,4)}, v{AR+s} offset:{slot*8192+4096}')
    for b in range(3):
        for u in range(2):
            r.append(f'ds_read_b64_tr_b16 {vr(f+12+4*b+2*u,2)}, v{AW+s} offset:{slot*12288 + 4*u*192 + 64*b}')
    r.append(f'ds_read_b128 {vr(G[p],4)}, v{AG+(s>>1)} offset:{slot*4096 + (s&1)*2048}')
    return r

def step_mfmas(kc, s):
    p = s & 1; f = F[p]
    first = (kc == 0 and s == 0)
    def c(acc, n, z): return '0' if z else vr(acc, n)
    m = []
    m.append(f'v_mfma_f32_32x32x16_bf16 {vr(DRE,16)}, {vr(f,4)}, {vr(f+4,4)}, {c(DRE,16,first)}')
    m.append(f'v_mfma_f32_32x32x16_bf16 {vr(DIM,16)}, {vr(f,4)}, {vr(f+8,4)}, {c(DIM,16,first)}')
    m.append(f'v_mfma_f32_16x16x32_bf16 {vr(RS,4)}, {vr(SEL,4)}, {vr(f,4)}, {c(RS,4,first)}')
    for b in range(3):
        m.append(f'v_mfma_f32_32x32x16_bf16 {vr(DM[b],16)}, {vr(f+12+4*b,4)}, {vr(f,4)}, {c(DM[b],16,first)}')
    m.append(f'v_mfma_f32_16x16x32_bf16 {vr(GR[s&1],4)}, {vr(G[p],4)}, {vr(G[p],4)}, {c(GR[s&1],4,kc==0 and s<2)}')
    if s == 0:
        for b in range(5):
            m.append(f'v_mfma_f32_16x16x32_bf16 {vr(CS+4*b,4)}, {vr(SEL,4)}, {vr(f+4+4*b,4)}, {c(CS+4*b,4,kc==0)}')
    return m

def stage1_setup(a):
    L = V_LANE
    t0, t1, t2, t3 = T, T+1, T+2, T+3
    a(f'v_lshrrev_b32 v{t0}, 5, v{L}')
    a(f'v_lshlrev_b32 v{t0}, 14, v{t0}')
    a(f'v_bfe_u32 v{t1}, v{L}, 3, 2')
    a(f'v_lshl_add_u32 v{t0}, v{t1}, 10, v{t0}')
    a(f'v_and_b32 v{t1}, 7, v{L}')
    a(f'v_lshrrev_b32 v{t2}, 4, v{L}')
    a(f'v_xor_b32 v{t1}, v{t1}, v{t2}')
    a(f'v_lshl_add_u32 v{VX}, v{t1}, 4, v{t0}')
    a(f'v_xor_b32 v{t1}, 4, v{t1}')
    a(f'v_lshl_add_u32 v{VX+1}, v{t1}, 4, v{t0}')
    a(f'v_add_u32 v{VX+1}, 3072, v{VX+1}')
    a(f'v_add_u32 v{VX+2}, {2*3072}, v{VX}')
    a(f'v_add_u32 v{VX+3}, {2*3072}, v{VX+1}')
    for u in range(3):
        a(f'v_add_u32 v{t0}, {u*64}, v{L}')
        a(f'v_mul_u32_u24 v{t1}, 171, v{t0}')
        a(f'v_lshrrev_b32 v{t1}, 11, v{t1}')
        a(f'v_mul_u32_u24 v{t2}, {2752-192}, v{t1}')
        a(f'v_lshl_add_u32 v{VW+u}, v{L}, 4, v{t2}')
    a(f'v_lshlrev_b32 v{V_L16}, 4, v{L}')

def stage1_setup2(a):
    L = V_LANE
    t0, t1, t2, t3 = T, T+1, T+2, T+3
    mk_srd(a, SRD_X, 'x'); mk_srd(a, SRD_W1, 'w1')
    a(f's_cmp_lt_u32 s{S_W}, 2')
    a(f's_cselect_b32 s{SRD_RI}, s{kp("bre")}, s{kp("bim")}')
    a(f's_cselect_b32 s{SRD_RI+1}, s{kp("bre")+1}, s{kp("bim")+1}')
    a(f's_mov_b32 s{SRD_RI+2}, {SIZES["bre"]}\ns_mov_b32 s{SRD_RI+3}, 0x20000')
    a(f's_lshl_b32 s{S_XB}, s{S_MT}, 17')
    a(f's_lshl_b32 s{S_T0}, s{S_W}, 15')
    a(f's_add_u32 s{S_XB}, s{S_XB}, s{S_T0}')
    a(f's_lshl_b32 s{S_RIB}, s{S_G}, 15')
    a(f's_and_b32 s{S_T0}, s{S_W}, 1')
    a(f's_lshl_b32 s{S_T0}, s{S_T0}, 13')
    a(f's_add_u32 s{S_RIB}, s{S_RIB}, s{S_T0}')
    a(f's_mul_i32 s{S_BLK0}, s{S_G}, 3')
    a(f's_min_u32 s{S_BLK0}, s{S_BLK0}, 40')
    a(f's_mul_i32 s{S_WB}, s{S_W}, {16*2752}')
    a(f's_lshl_b32 s{S_T0}, s{S_BLK0}, 6')
    a(f's_add_u32 s{S_WB}, s{S_WB}, s{S_T0}')
    rot = opt('rot', 0)
    if rot == 0:
        a(f's_add_u32 s{S_ROT}, s{S_MT}, s{S_G}')
        a(f's_add_u32 s{S_ROT}, s{S_ROT}, s{S_G}')
    elif rot == 1:
        a(f's_mov_b32 s{S_ROT}, 0')
    elif rot == 2:
        a(f's_and_b32 s{S_ROT}, s2, 7')
    elif rot == 3:
        a(f's_and_b32 s{S_ROT}, s2, 1')
        a(f's_lshl_b32 s{S_ROT}, s{S_ROT}, 2')
    a(f's_lshl_b32 s{S_MX}, s{S_W}, 14')
    a(f's_lshl_b32 s{S_MRI}, s{S_W}, 11')
    a(f's_add_u32 s{S_MRI}, s{S_MRI}, {RI_BASE}')
    a(f's_mul_i32 s{S_MW}, s{S_W}, 3072')
    a(f's_add_u32 s{S_MW}, s{S_MW}, {W_BASE}')

def stage1_setup3a(a):
    L = V_LANE
    t0, t1, t2, t3, t4, t5, t6, t7 = range(T, T+8)
    mk_srd(a, SRD_WS, 'ws')
    a(f'v_bfe_u32 v{t0}, v{L}, 2, 1')
    a(f'v_bfe_u32 v{t1}, v{L}, 3, 2')
    a(f'v_and_b32 v{t2}, 3, v{L}')
    a(f'v_lshl_add_u32 v{t2}, v{t1}, 2, v{t2}')
    a(f'v_lshl_add_u32 v{V_TAU}, v{t0}, 4, v{t2}')
    a(f's_lshl_b32 s{S_T0}, s{S_G}, 6')
    a(f'v_lshl_add_u32 v{t0}, v{V_TAU}, 1, s{S_T0}')
    a(f'global_load_ushort v{t5}, v{t0}, s[{kp("lre")}:{kp("lre")+1}]')
    a(f'global_load_ushort v{t6}, v{t0}, s[{kp("lim")}:{kp("lim")+1}]')
    a(f'global_load_ushort v{t7}, v{t0}, s[{kp("logdt")}:{kp("logdt")+1}]')
    a(f'v_min_u32 v{t0}, 95, v0')
    a(f's_lshl_b32 s{S_T0}, s{S_BLK0}, 6')
    a(f'v_lshl_add_u32 v{t1}, v{t0}, 1, s{S_T0}')
    a(f'global_load_ushort v{T+8}, v{t1}, s[{kp("b1")}:{kp("b1")+1}]')
    a(f'v_lshlrev_b32 v{T+9}, 2, v{t0}')
    a(f's_lshl_b32 s{S_T0}, s{S_G}, 7')
    a(f's_add_u32 s{S_T0}, s{S_T0}, {EPOCH_OFF}')
    a(f'v_mov_b32 v{t0}, 0')
    a(f'buffer_load_dwordx2 {vr(T+10,2)}, v{t0}, {srd(SRD_WS)}, s{S_T0} offen sc1')

def stage1_setup3b(a):
    L = V_LANE
    t0, t1, t2, t3, t4, t5, t6, t7 = range(T, T+8)
    a(f'v_and_b32 v{t0}, 31, v{L}')
    a(f'v_lshlrev_b32 v{t0}, 7, v{t0}')
    a(f'v_bfe_u32 v{t1}, v{L}, 1, 3')
    a(f'v_lshrrev_b32 v{t2}, 5, v{L}')
    a(f'v_xor_b32 v{t1}, v{t1}, v{t2}')
    for s in range(4):
        a(f's_add_u32 s{S_T0}, s{S_W}, {s}')
        a(f's_and_b32 s{S_T0}, s{S_T0}, 3')
        a(f's_lshl_b32 s{S_T1}, s{S_T0}, 1')
        a(f'v_xor_b32 v{t2}, s{S_T1}, v{t1}')
        a(f'v_lshl_add_u32 v{t2}, v{t2}, 4, v{t0}')
        a(f'v_add_u32 v{AX+s}, s{S_MX}, v{t2}')
        a(f'v_add_u32 v{AR+s}, {RI_BASE}, v{t2}')
        a(f's_mul_i32 s{S_T1}, s{S_T0}, {16*192}')
        a(f's_add_u32 s{S_T1}, s{S_T1}, {W_BASE}')
        a(f'v_mov_b32 v{AW+s}, s{S_T1}')
    a(f'v_lshrrev_b32 v{t0}, 5, v{L}')
    a(f'v_bfe_u32 v{t1}, v{L}, 2, 2')
    a(f'v_lshl_add_u32 v{t0}, v{t0}, 3, v{t1}')
    a(f'v_mul_u32_u24 v{t0}, 192, v{t0}')
    a(f'v_bfe_u32 v{t1}, v{L}, 4, 1')
    a(f'v_lshl_add_u32 v{t0}, v{t1}, 5, v{t0}')
    a(f'v_and_b32 v{t1}, 3, v{L}')
    a(f'v_lshl_add_u32 v{t0}, v{t1}, 3, v{t0}')
    for s in range(4):
        a(f'v_add_u32 v{AW+s}, v{AW+s}, v{t0}')
    a(f'v_and_b32 v{t0}, 15, v{L}')
    a(f'v_lshlrev_b32 v{t0}, 7, v{t0}')
    a(f'v_add_u32 v{t0}, s{S_MX}, v{t0}')
    a(f'v_bfe_u32 v{t1}, v{L}, 1, 3')
    a(f'v_lshrrev_b32 v{t2}, 4, v{L}')
    a(f'v_xor_b32 v{t1}, v{t1}, v{t2}')
    a(f'v_lshl_add_u32 v{AG}, v{t1}, 4, v{t0}')
    a(f'v_xor_b32 v{t1}, 4, v{t1}')
    a(f'v_lshl_add_u32 v{AG+1}, v{t1}, 4, v{t0}')
    a(f'v_lshrrev_b32 v{t0}, 2, v{L}')
    a(f'v_xor_b32 v{t0}, v{t0}, v{t2}')
    a(f'v_and_b32 v{t0}, 1, v{t0}')
    a(f'v_cmp_eq_u32 vcc, 0, v{t0}')
    a(f'v_mov_b32 v{t1}, 0x3f803f80')
    for j in range(4):
        a(f'v_cndmask_b32 v{SEL+j}, 0, v{t1}, vcc')
    a(f's_mov_b32 s{S_M1}, 0xaaaaaaaa\ns_mov_b32 s{S_M1+1}, 0xaaaaaaaa')
    a(f's_mov_b32 s{S_M2}, 0xcccccccc\ns_mov_b32 s{S_M2+1}, 0xcccccccc')
    a(f's_mov_b32 s{S_M16}, 0xffff0000\ns_mov_b32 s{S_M16+1}, 0xffff0000')
    a(f'v_lshrrev_b32 v{t0}, 5, v{L}')
    a(f's_lshl_b32 s{S_T0}, s{S_W}, 1')
    a(f'v_add_u32 v{V_SIG}, s{S_T0}, v{t0}')
    a(f's_lshl_b32 s{S_T0}, s{S_MT}, 2')
    a(f's_add_u32 s{S_T0}, s{S_T0}, s{S_W}')
    a(f's_mul_i32 s{S_A2}, s{S_T0}, {RB_STRIDE}')
    lre, lim, ldt = t5, t6, t7
    a(f'v_lshlrev_b32 v{lre}, 16, v{lre}')
    a(f'v_lshlrev_b32 v{lim}, 16, v{lim}')
    a(f'v_lshlrev_b32 v{ldt}, 16, v{ldt}')
    a(f'v_mul_f32 v{ldt}, {f32(math.log2(math.e))}, v{ldt}')
    a(f'v_exp_f32 v{ldt}, v{ldt}')
    bf16r(a, ldt, ldt)
    zl, zv = t3, t4
    a(f'v_mul_f32 v{zl}, v{ldt}, v{lre}')
    a(f'v_mul_f32 v{zv}, v{ldt}, v{lim}')
    a(f'v_mul_f32 v{zl}, {f32(math.log2(math.e))}, v{zl}')
    a(f'v_mul_f32 v{zv}, {f32(1/(2*math.pi))}, v{zv}')
    cexp(a, P_AR, P_AI, zl, zv, '1.0', t0, t1)
    cexp(a, P_A16R, P_A16I, zl, zv, f32(16.0), t0, t1)
    cexp(a, P_A128R, P_A128I, zl, zv, f32(128.0), t0, t1)
    cexp(a, P_A256R, P_A256I, zl, zv, f32(256.0), t0, t1)
    a(f'v_lshlrev_b32 v{t2}, 4, v{V_SIG}')
    a(f'v_cvt_f32_u32 v{t2}, v{t2}')
    cexp(a, P_PWR, P_PWI, zl, zv, f'v{t2}', t0, t1)
    a(f'v_mul_f32 v{t0}, v{lre}, v{lre}')
    a(f'v_fma_f32 v{t0}, v{lim}, v{lim}, v{t0}')
    a(f'v_rcp_f32 v{t0}, v{t0}')
    a(f'v_add_f32 v{t1}, -1.0, v{P_AR}')
    a(f'v_add_f32 v{t0}, v{t0}, v{t0}')
    a(f'v_mul_f32 v{P_KR}, v{t1}, v{lre}')
    a(f'v_fma_f32 v{P_KR}, -v{P_AI}, v{lim}, v{P_KR}')
    a(f'v_mul_f32 v{P_KI}, -v{P_AI}, v{lre}')
    a(f'v_fma_f32 v{P_KI}, -v{t1}, v{lim}, v{P_KI}')
    a(f'v_mul_f32 v{P_KR}, v{P_KR}, v{t0}')
    a(f'v_mul_f32 v{P_KI}, v{P_KI}, v{t0}')
    a(f'v_lshlrev_b32 v{T+8}, 16, v{T+8}')
    a(f'v_add_u32 v{T+9}, {B1T}, v{T+9}')
    a(f'ds_write_b32 v{T+9}, v{T+8}')
    a(f'v_readfirstlane_b32 s{S_TAG}, v{T+10}')
    a(f'v_readfirstlane_b32 s{S_TAG+1}, v{T+11}')
    a(f's_mul_i32 s{S_TAG}, s{S_TAG}, 0x0019660d')
    a(f's_add_u32 s{S_TAG}, s{S_TAG}, 0x3c6ef35f')
    a(f's_mul_i32 s{S_TAG+1}, s{S_TAG+1}, 0x41c64e6d')
    a(f's_add_u32 s{S_TAG+1}, s{S_TAG+1}, 0x00003039')

def interleave(a, mf, others, per=2):
    others = list(others)
    n = len(mf)
    for i, m in enumerate(mf):
        a(m)
        k = -(-len(others) // (n - i))
        k = min(len(others), max(k, per))
        for _ in range(k): a(others.pop(0))
    for o in others: a(o)

def stage1_loop(a):
    a('@wait dma0')
    a('@waitds')
    a('s_barrier')
    ts(a, 3)
    for r in frag_reads(0, 0): a(r)
    for kc in range(8):
        for s in range(4):
            mf = step_mfmas(kc, s)
            if s < 3:
                interleave(a, mf, frag_reads(kc, s + 1))
            else:
                if kc == 7:
                    for m in mf: a(m)
                    continue
                a('@waitds')
                a(mf[0]); a(mf[1])
                a(f'@wait dma{kc+1}')
                a('s_barrier')
                ts(a, 4 + kc)
                interleave(a, mf[2:5], frag_reads(kc + 1, 0), per=4)
                if kc + 4 < 8: dma_chunk(a, kc + 4)
                for m in mf[5:]: a(m)

def stage1_epilogue(a, fused=False):
    L = V_LANE
    t = list(range(T, T + 32))
    a(f'v_and_b32 v{t[0]}, 31, v{L}')
    a(f'v_lshlrev_b32 v{V_I4}, 4, v{t[0]}')
    a(f's_lshl_b32 s{S_T0}, s{S_W}, 2')
    a(f's_add_u32 s{S_T0}, s{S_T0}, {CSX}')
    a(f'v_add_u32 v{t[1]}, s{S_T0}, v{V_I4}')
    for b in range(5):
        a(f'ds_write_b32 v{t[1]}, v{CS+4*b} offset:{b*512}')
    for hh in range(2):
        g = GR[hh]
        a(f'v_cndmask_b32 v{t[2]}, v{g}, v{g+1}, s[{S_M1}:{S_M1+1}]')
        a(f'v_cndmask_b32 v{t[3]}, v{g+2}, v{g+3}, s[{S_M1}:{S_M1+1}]')
        a(f'v_cndmask_b32 v{t[4+hh]}, v{t[2]}, v{t[3]}, s[{S_M2}:{S_M2+1}]')
    a(f'v_and_b32 v{t[2]}, 15, v{L}')
    a(f'v_bfe_u32 v{t[3]}, v{L}, 2, 2')
    a(f'v_lshl_add_u32 v{t[2]}, v{t[3]}, 4, v{t[2]}')
    a(f'v_lshlrev_b32 v{t[2]}, 2, v{t[2]}')
    a(f'ds_bpermute_b32 v{t[4]}, v{t[2]}, v{t[4]}')
    a(f'ds_bpermute_b32 v{t[5]}, v{t[2]}, v{t[5]}')
    mean, var, mb, d, rinv, rho, nrm = t[6], t[7], t[8], t[9+1], t[9], t[11], t[12]
    a(f'v_mul_f32 v{mean}, {f32(1/512)}, v{RS}')
    a(f'v_cndmask_b32 v{var}, v{t[4]}, v{t[5]}, s[{S_M16}:{S_M16+1}]')
    a(f'v_mul_f32 v{var}, {f32(1/512)}, v{var}')
    a(f'v_fma_f32 v{var}, -v{mean}, v{mean}, v{var}')
    a(f'v_max_f32 v{var}, 0, v{var}')
    bf16r(a, mb, mean)
    bf16r(a, d, var)
    a(f'v_add_f32 v{d}, {f32(1e-5)}, v{d}')
    bf16r(a, d, d)
    a(f'v_sqrt_f32 v{d}, v{d}')
    bf16r(a, d, d)
    a(f'v_rcp_f32 v{rinv}, v{d}')
    a(f'v_sub_f32 v{t[2]}, v{mean}, v{mb}')
    a(f'v_mul_f32 v{t[2]}, v{t[2]}, v{rinv}')
    a(f'v_mul_f32 v{t[3]}, v{var}, v{rinv}')
    a(f'v_mul_f32 v{t[3]}, v{t[3]}, v{rinv}')
    bf16r(a, t[2], t[2])
    bf16r(a, t[3], t[3])
    a(f'v_add_f32 v{t[3]}, {f32(1e-5)}, v{t[3]}')
    bf16r(a, t[3], t[3])
    a(f'v_sqrt_f32 v{t[3]}, v{t[3]}')
    bf16r(a, t[3], t[3])
    a(f'v_rcp_f32 v{t[3]}, v{t[3]}')
    a(f'v_fma_f32 v{t[2]}, v{t[2]}, v{d}, v{mb}')
    a(f'v_mul_f32 v{rho}, v{rinv}, v{t[3]}')
    a(f'v_mul_f32 v{nrm}, -v{rho}, v{t[2]}')
    a(f's_lshl_b32 s{S_T0}, s{S_W}, 8')
    a(f's_add_u32 s{S_T0}, s{S_T0}, {STT}')
    a(f'v_lshl_add_u32 v{t[2]}, v{V_TAU}, 2, s{S_T0}')
    a(f'ds_write_b32 v{t[2]}, v{mb}')
    a(f'ds_write_b32 v{t[2]}, v{rinv} offset:128')
    a(f's_lshr_b32 s{S_T1}, s{S_XB}, 7')
    a(f's_add_u32 s{S_T1}, s{S_T1}, {STATS_OFF}')
    a(f'v_lshlrev_b32 v{t[3]}, 3, v{V_TAU}')
    a(f'buffer_store_dwordx2 {vr(mb,2)}, v{t[3]}, {srd(SRD_WS)}, s{S_T1} offen sc1')
    a('@waitds')
    a('s_barrier')
    a(f'v_add_u32 v{t[2]}, {CSX}, v{V_I4}')
    a(f'v_add_u32 v{t[3]}, {CSX+64*16}, v{V_L16}')
    c0, c1, c2, c3 = 80, 84, 88, 92
    a(f'ds_read_b128 {vr(c0,4)}, v{t[2]}')
    a(f'ds_read_b128 {vr(c1,4)}, v{t[2]} offset:512')
    a(f'ds_read_b128 {vr(c2,4)}, v{t[3]}')
    a(f'ds_read_b128 {vr(c3,4)}, v{t[2]} offset:2048')
    a(f'v_lshrrev_b32 v{t[4]}, 5, v{L}')
    a(f'v_lshl_add_u32 v{t[4]}, v{t[4]}, 6, s{S_T0}')
    for q in range(4):
        a(f'ds_read_b128 {vr(48+4*q,4)}, v{t[4]} offset:{q*16}')
    for q in range(4):
        a(f'ds_read_b128 {vr(64+4*q,4)}, v{t[4]} offset:{128+q*16}')
    for c in (c0, c1, c2, c3):
        a(f'v_add_f32 v{c}, v{c}, v{c+1}')
        a(f'v_add_f32 v{c+2}, v{c+2}, v{c+3}')
        a(f'v_add_f32 v{c}, v{c}, v{c+2}')
    a(f's_mul_i32 s{S_T1}, s{S_W}, 384')
    a(f's_add_u32 s{S_T1}, s{S_T1}, {SMT}')
    a(f'v_lshl_add_u32 v{t[2]}, v{L}, 2, s{S_T1}')
    a(f'v_lshl_add_u32 v{t[3]}, v{t[0]}, 2, s{S_T1}')
    a(f'ds_write_b32 v{t[2]}, v{c2}')
    a(f'ds_write_b32 v{t[3]}, v{c3} offset:256')
    S1, S2 = t[13], t[14]
    a(f'v_mul_f32 v{S1}, v{P_KR}, v{c0}')
    a(f'v_fma_f32 v{S1}, -v{P_KI}, v{c1}, v{S1}')
    a(f'v_mul_f32 v{S2}, v{P_KR}, v{c1}')
    a(f'v_fma_f32 v{S2}, v{P_KI}, v{c0}, v{S2}')
    AS, AB = t[15], t[16]
    a(f'v_lshrrev_b32 v{t[4]}, 5, v{L}')
    a(f'v_lshl_add_u32 v{AS}, v{t[4]}, 4, s{S_T1}')
    a(f'v_lshlrev_b32 v{AB}, 4, v{t[4]}')
    a(f'v_add_u32 v{AB}, {B1T}, v{AB}')
    ts(a, 13)
    er, ei, nr, ni = t[18], t[19], t[20], t[21]
    for r in range(16):
        u1, u2 = t[2 + 2*(r & 1)], t[3 + 2*(r & 1)]
        a(f'v_mul_f32 v{u1}, v{P_KR}, v{DRE+r}')
        a(f'v_mul_f32 v{u2}, -v{P_KR}, v{DIM+r}')
        a(f'v_fma_f32 v{u1}, -v{P_KI}, v{DIM+r}, v{u1}')
        a(f'v_fma_f32 v{u2}, -v{P_KI}, v{DRE+r}, v{u2}')
        a(f'v_fma_f32 v{u1}, -v{48+r}, v{S1}, v{u1}')
        a(f'v_fma_f32 v{u2}, v{48+r}, v{S2}, v{u2}')
        a(f'v_mul_f32 v{DRE+r}, v{u1}, v{64+r}')
        a(f'v_mul_f32 v{DIM+r}, v{u2}, v{64+r}')
        if r == 0:
            pr, pi = DRE, DIM
        else:
            cr, ci = (er, ei) if (r & 1) else (nr, ni)
            a(f'v_fma_f32 v{cr}, v{P_AR}, v{pr}, v{DRE+r}')
            a(f'v_fma_f32 v{ci}, v{P_AR}, v{pi}, v{DIM+r}')
            a(f'v_fma_f32 v{cr}, -v{P_AI}, v{pi}, v{cr}')
            a(f'v_fma_f32 v{ci}, v{P_AI}, v{pr}, v{ci}')
            pr, pi = cr, ci
    assert (pr, pi) == (er, ei)
    a(f'v_lshlrev_b32 v{t[2]}, 3, v{t[0]}')
    a(f'v_add_u32 v{t[2]}, {SEG}, v{t[2]}')
    a(f'v_lshl_add_u32 v{t[3]}, v{V_SIG}, 8, v{t[2]}')
    a(f'ds_write_b64 v{t[3]}, {vr(er,2)}')
    a('@waitds')
    a('s_barrier')
    for j in range(8):
        a(f'ds_read_b64 {vr(48+2*j,2)}, v{t[2]} offset:{j*256}')
    LCR, LCI = t[22], t[23]
    a(f'v_mov_b32 v{LCR}, 0\nv_mov_b32 v{LCI}, 0')
    for j in range(8):
        e = 48 + 2*j
        if j > 0:
            pe = e - 2
            a(f'v_cmp_eq_u32 vcc, {j}, v{V_SIG}')
            a(f'v_fma_f32 v{e}, v{P_A16R}, v{pe}, v{e}')
            a(f'v_fma_f32 v{e+1}, v{P_A16R}, v{pe+1}, v{e+1}')
            a(f'v_cndmask_b32 v{LCR}, v{LCR}, v{pe}, vcc')
            a(f'v_cndmask_b32 v{LCI}, v{LCI}, v{pe+1}, vcc')
            a(f'v_fma_f32 v{e}, -v{P_A16I}, v{pe+1}, v{e}')
            a(f'v_fma_f32 v{e+1}, v{P_A16I}, v{pe}, v{e+1}')
    a(f'v_mov_b32 v64, v62\nv_mov_b32 v65, v63\nv_mov_b32 v66, s{S_TAG}\nv_mov_b32 v67, s{S_TAG+1}')
    a(f's_lshl_b32 s{S_T0}, s{S_G}, 4')
    a(f's_add_u32 s{S_T0}, s{S_T0}, s{S_MT}')
    a(f's_lshl_b32 s{S_T0}, s{S_T0}, 9')
    a(f's_add_u32 s{S_T3}, s{S_T0}, {CARRY_OFF}')
    a(f's_lshl_b32 s{S_T1}, s{S_W}, 3')
    a(f's_lshl_b32 s{S_EX}, 0xff, s{S_T1}')
    a(f's_mov_b32 s{S_EX+1}, 0')
    a(f's_mov_b64 exec, s[{S_EX}:{S_EX+1}]')
    a(f'buffer_store_dwordx4 {vr(64,4)}, v{V_I4}, {srd(SRD_WS)}, s{S_T3} offen sc1')
    a('s_mov_b64 exec, -1')
    ts(a, 14)
    c1 = -2.0 * math.sqrt(2.0 / math.pi) * math.log2(math.e)
    c2 = c1 * 0.044715
    a(f's_mov_b32 s{S_T1}, {f32(c2)}')
    GA = 100
    def gather_issue():
        a(f'v_lshrrev_b32 v{t[2]}, 5, v{L}')
        a(f'v_lshlrev_b32 v{t[2]}, 9, v{t[2]}')
        a(f'v_sub_u32 v{t[24]}, v{V_I4}, v{t[2]}')
        a(f'v_add_u32 v{t[24]}, 512, v{t[24]}')
        a(f's_sub_u32 s{S_T2}, s{S_T3}, {8192}')
        a(f's_add_u32 s{S_T0}, s{S_T2}, 4096')
        for j in range(8):
            off = 7168 - 1024*j
            sreg = S_T0 if off >= 4096 else S_T2
            a(f'buffer_load_dwordx4 {vr(GA+4*j,4)}, v{t[24]}, {srd(SRD_WS)}, s{sreg} offen offset:{off & 4095} sc1')
    for b in range(3):
        D = DM[b]
        for q in range(4):
            a(f'ds_read_b128 {vr(48+4*q,4)}, v{AS} offset:{b*128 + q*32}')
            a(f'ds_read_b128 {vr(64+4*q,4)}, v{AB} offset:{b*128 + q*32}')
        if b == 2: gather_issue()
        a(f'v_mov_b32 v{t[25]}, {f32(c1)}')
        for r0 in range(0, 16, 4):
            rs = range(r0, r0 + 4)
            for r in rs: a(f'v_fma_f32 v{48+r}, v{nrm}, v{48+r}, v{64+r}')
            for r in rs: a(f'v_fma_f32 v{D+r}, v{rho}, v{D+r}, v{48+r}')
            for r in rs: a(f'v_mul_f32 v{48+r}, v{D+r}, v{D+r}')
            for r in rs: a(f'v_fma_f32 v{48+r}, v{48+r}, s{S_T1}, v{t[25]}')
            for r in rs: a(f'v_mul_f32 v{48+r}, v{48+r}, v{D+r}')
            for r in rs: a(f'v_exp_f32 v{48+r}, v{48+r}')
            for r in rs: a(f'v_add_f32 v{48+r}, 1.0, v{48+r}')
            for r in rs: a(f'v_rcp_f32 v{48+r}, v{48+r}')
            for r in rs: a(f'v_mul_f32 v{D+r}, v{D+r}, v{48+r}')
            a(f'v_cvt_pk_bf16_f32 v{80+r0//2}, v{D+r0}, v{D+r0+1}')
            a(f'v_cvt_pk_bf16_f32 v{81+r0//2}, v{D+r0+2}, v{D+r0+3}')
        a(f's_add_u32 s{S_EX}, s{S_BLK0}, {b}')
        a(f's_mul_i32 s{S_EX+1}, s{S_G}, 3')
        a(f's_cmp_ge_u32 s{S_EX}, s{S_EX+1}')
        a(f's_lshl_b32 s{S_EX}, s{S_EX}, 11')
        a(f's_add_u32 s{S_EX}, s{S_EX}, s{S_A2}')
        a(f's_add_u32 s{S_EX}, s{S_EX}, {64*1024}')
        a(f's_add_u32 s{S_ROT}, s{S_BLK0}, {b}')
        a(f's_cmp_ge_u32 s{S_ROT}, s{S_EX+1}')
        a(f's_lshl_b32 s{S_ROT}, s2, 2')
        a(f's_add_u32 s{S_ROT}, s{S_ROT}, s{S_W}')
        a(f's_mul_i32 s{S_ROT}, s{S_ROT}, 6144')
        a(f's_add_u32 s{S_ROT}, s{S_ROT}, {0x1000000 + b*2048}')
        a(f's_add_u32 s{S_WB}, s{S_BLK0}, {b}')
        a(f's_cmp_ge_u32 s{S_WB}, s{S_EX+1}')
        a(f's_cselect_b32 s{S_EX}, s{S_EX}, s{S_ROT}')
        a(f'buffer_store_dwordx4 {vr(80,4)}, v{V_L16}, {srd(SRD_WS)}, s{S_EX} offen sc1')
        a(f'buffer_store_dwordx4 {vr(84,4)}, v{V_L16}, {srd(SRD_WS)}, s{S_EX} offen offset:1024 sc1')
    ts(a, 15)
    mm = t[26]
    a(f'v_lshrrev_b32 v{t[2]}, 5, v{L}')
    a(f's_sub_u32 s{S_EX}, s{S_MT}, 1')
    a(f'v_sub_u32 v{mm}, s{S_EX}, v{t[2]}')
    def check():
        a(f'v_mov_b32 v{t[3]}, 0')
        for j in range(8):
            g = GA + 4*j
            a(f'v_xor_b32 v{t[4]}, s{S_TAG}, v{g+2}')
            a(f'v_xor_b32 v{t[5]}, s{S_TAG+1}, v{g+3}')
            a(f'v_cmp_le_i32 vcc, {2*j}, v{mm}')
            a(f'v_or_b32 v{t[4]}, v{t[4]}, v{t[5]}')
            a(f'v_cndmask_b32 v{t[4]}, 0, v{t[4]}, vcc')
            a(f'v_cndmask_b32 v{g}, 0, v{g}, vcc')
            a(f'v_cndmask_b32 v{g+1}, 0, v{g+1}, vcc')
            a(f'v_or_b32 v{t[3]}, v{t[3]}, v{t[4]}')
        a(f'v_cmp_ne_u32 vcc, 0, v{t[3]}')
    a(f's_mov_b32 s{S_ROT}, 0')
    a(f'@waitregs {vr(GA,32)}')
    a('L_carry_retry:')
    check()
    a('s_nop 4')
    a('s_cbranch_vccz L_carry_ok')
    a('@raw')
    a('s_sleep 2')
    for j in range(8):
        off = 7168 - 1024*j
        sreg = S_T0 if off >= 4096 else S_T2
        a(f'buffer_load_dwordx4 {vr(GA+4*j,4)}, v{t[24]}, {srd(SRD_WS)}, s{sreg} offen offset:{off & 4095} sc1')
    a(f's_add_u32 s{S_ROT}, s{S_ROT}, 1')
    a(f's_cmp_lt_u32 s{S_ROT}, 20000')
    a('s_waitcnt vmcnt(0)')
    a('s_cbranch_scc1 L_carry_retry')
    a('@endraw')
    a('L_carry_ok:')
    ts(a, 16)
    for j in range(6, -1, -1):
        g = GA + 4*j; pg = g + 4
        a(f'v_fma_f32 v{g}, v{P_A256R}, v{pg}, v{g}')
        a(f'v_fma_f32 v{g+1}, v{P_A256R}, v{pg+1}, v{g+1}')
        a(f'v_fma_f32 v{g}, -v{P_A256I}, v{pg+1}, v{g}')
        a(f'v_fma_f32 v{g+1}, v{P_A256I}, v{pg}, v{g+1}')
    a(f'v_mov_b32 v{GA+2}, v{GA}\nv_mov_b32 v{GA+3}, v{GA+1}')
    a(f'v_permlane32_swap_b32 v{GA}, v{GA+2}')
    a(f'v_permlane32_swap_b32 v{GA+1}, v{GA+3}')
    a(f'v_fma_f32 v{GA}, v{P_A128R}, v{GA+2}, v{GA}')
    a(f'v_fma_f32 v{GA+1}, v{P_A128R}, v{GA+3}, v{GA+1}')
    a(f'v_fma_f32 v{GA}, -v{P_A128I}, v{GA+3}, v{GA}')
    a(f'v_fma_f32 v{GA+1}, v{P_A128I}, v{GA+2}, v{GA+1}')
    a(f'v_fma_f32 v{LCR}, v{P_PWR}, v{GA}, v{LCR}')
    a(f'v_fma_f32 v{LCI}, v{P_PWR}, v{GA+1}, v{LCI}')
    a(f'v_fma_f32 v{LCR}, -v{P_PWI}, v{GA+1}, v{LCR}')
    a(f'v_fma_f32 v{LCI}, v{P_PWI}, v{GA}, v{LCI}')
    pr, pi = LCR, LCI
    for r in range(16):
        a(f'v_fma_f32 v{DRE+r}, v{P_AR}, v{pr}, v{DRE+r}')
        a(f'v_fma_f32 v{DIM+r}, v{P_AR}, v{pi}, v{DIM+r}')
        a(f'v_fma_f32 v{DRE+r}, -v{P_AI}, v{pi}, v{DRE+r}')
        a(f'v_fma_f32 v{DIM+r}, v{P_AI}, v{pr}, v{DIM+r}')
        pr, pi = DRE + r, DIM + r
        if r & 1:
            a(f'v_cvt_pk_bf16_f32 v{48+r//2}, v{DRE+r-1}, v{DRE+r}')
            a(f'v_cvt_pk_bf16_f32 v{56+r//2}, v{DIM+r-1}, v{DIM+r}')
    a(f'v_lshrrev_b32 v{t[2]}, 5, v{L}')
    a(f'v_lshlrev_b32 v{t[2]}, 5, v{t[2]}')
    a(f'v_lshl_add_u32 v{t[2]}, v{V_TAU}, 6, v{t[2]}')
    a(f'v_add_u32 v{t[2]}, s{S_MX}, v{t[2]}')
    a(f'ds_write_b128 v{t[2]}, {vr(48,4)}')
    a(f'ds_write_b128 v{t[2]}, {vr(52,4)} offset:16')
    a(f'ds_write_b128 v{t[2]}, {vr(56,4)} offset:2048')
    a(f'ds_write_b128 v{t[2]}, {vr(60,4)} offset:2064')
    a(f'v_lshrrev_b32 v{t[3]}, 5, v{L}')
    a(f'v_bfe_u32 v{t[4]}, v{L}, 2, 2')
    a(f'v_lshl_add_u32 v{t[3]}, v{t[3]}, 3, v{t[4]}')
    a(f'v_lshlrev_b32 v{t[3]}, 6, v{t[3]}')
    a(f'v_and_b32 v{t[4]}, 1, v{L}')
    a(f'v_lshl_add_u32 v{t[3]}, v{t[4]}, 5, v{t[3]}')
    a(f'v_bfe_u32 v{t[4]}, v{L}, 4, 1')
    a(f'v_lshl_add_u32 v{t[3]}, v{t[4]}, 4, v{t[3]}')
    a(f'v_bfe_u32 v{t[4]}, v{L}, 1, 1')
    a(f'v_lshl_add_u32 v{t[3]}, v{t[4]}, 3, v{t[3]}')
    a(f'v_add_u32 v{t[3]}, s{S_MX}, v{t[3]}')
    a('@waitds')
    for part in range(2):
        for k in range(2):
            for u in range(2):
                a(f'ds_read_b64_tr_b16 {vr(64+part*8+k*4+u*2,2)}, v{t[3]} offset:{part*2048 + k*1024 + u*256}')
    a(f's_lshl_b32 s{S_T0}, s{S_G}, 11')
    a(f's_add_u32 s{S_T0}, s{S_T0}, s{S_A2}')
    a(f's_add_u32 s{S_T1}, s{S_T0}, {32*1024}')
    for part in range(2):
        for k in range(2):
            a(f'buffer_store_dwordx4 {vr(64+part*8+k*4,4)}, v{V_L16}, {srd(SRD_WS)}, s{S_T1 if part else S_T0} offen offset:{k*1024} sc1')
    ts(a, 17)
    if not fused:
        a('s_barrier')
        a(f's_cmp_eq_u32 s{S_MT}, 15')
        a('s_cbranch_scc0 L_k1_done')
        a(f's_lshl_b32 s{S_T0}, s{S_G}, 7')
        a(f's_add_u32 s{S_T0}, s{S_T0}, {EPOCH_OFF}')
        a(f'v_mov_b32 v{t[2]}, s{S_TAG}\nv_mov_b32 v{t[3]}, s{S_TAG+1}\nv_mov_b32 v{t[4]}, 0')
        a(f'buffer_store_dwordx2 {vr(t[2],2)}, v{t[4]}, {srd(SRD_WS)}, s{S_T0} offen sc1')
        a('L_k1_done:')


S_RT, S_CT = 3, 4
S_SA = (40, 41)
S_REG = 44
V2 = 8
AC = 12
AT = 16
RING = 48; RING_N = 12
ACC = 144; BV = 208
SEQ = [('m', n) for n in range(20)] + [('r', n) for n in range(8)] + [('i', n) for n in range(8)] + [('m', 20), ('m', 21)]
def breg(p, cb):
    if p < 32: return 'a', 8*p + 4*cb
    return 'v', BV + 8*(p-32) + 4*cb
def rr(k, b, n): return f'{k}[{b}:{b+n-1}]'

def ids2(a):
    a(f's_and_b32 s{S_T0}, s2, 7')
    a(f's_lshr_b32 s{S_T1}, s2, 3')
    a(f's_lshl_b32 s{S_RT}, s{S_T0}, 2')
    a(f's_and_b32 s{S_T2}, s{S_T1}, 3')
    a(f's_add_u32 s{S_RT}, s{S_RT}, s{S_T2}')
    a(f's_lshr_b32 s{S_CT}, s{S_T1}, 2')

def stage2_setup(a, region_stride):
    L = V_LANE
    t0, t1, t2, t3 = 20, 21, 22, 23
    mk_srd(a, SRD_CRE, 'cre'); mk_srd(a, SRD_CIM, 'cim'); mk_srd(a, SRD_W2, 'w2'); mk_srd(a, SRD_OUT, 'out')
    a(f's_mul_i32 s{S_REG}, s{S_W}, {region_stride}')
    a(f'v_lshrrev_b32 v{t0}, 3, v{L}')
    a(f'v_lshlrev_b32 v{t0}, 10, v{t0}')
    a(f'v_bfe_u32 v{t1}, v{L}, 4, 1')
    a(f'v_lshlrev_b32 v{t1}, 2, v{t1}')
    a(f'v_and_b32 v{t2}, 7, v{L}')
    a(f'v_xor_b32 v{t1}, v{t1}, v{t2}')
    a(f'v_lshl_add_u32 v{V2}, v{t1}, 4, v{t0}')
    for e in range(1, 4):
        a(f'v_add_u32 v{V2+e}, {e*7168}, v{V2}')
    a(f'v_and_b32 v{t0}, 31, v{L}')
    a(f'v_lshlrev_b32 v{t0}, 7, v{t0}')
    a(f'v_add_u32 v{t0}, s{S_REG}, v{t0}')
    a(f'v_bfe_u32 v{t1}, v{L}, 1, 3')
    a(f'v_lshrrev_b32 v{t2}, 5, v{L}')
    a(f'v_xor_b32 v{t1}, v{t1}, v{t2}')
    for s in range(4):
        a(f'v_xor_b32 v{t2}, {2*s}, v{t1}')
        a(f'v_lshl_add_u32 v{AC+s}, v{t2}, 4, v{t0}')
    a(f'v_lshrrev_b32 v{t0}, 5, v{L}')
    a(f'v_bfe_u32 v{t1}, v{L}, 2, 2')
    a(f'v_lshl_add_u32 v{t0}, v{t0}, 2, v{t1}')
    a(f'v_lshlrev_b32 v{t0}, 7, v{t0}')
    a(f'v_and_b32 v{t1}, 1, v{L}')
    a(f'v_lshl_add_u32 v{t0}, v{t1}, 5, v{t0}')
    a(f'v_bfe_u32 v{t1}, v{L}, 4, 1')
    a(f'v_lshl_add_u32 v{t0}, v{t1}, 4, v{t0}')
    a(f'v_bfe_u32 v{t1}, v{L}, 1, 1')
    a(f'v_lshl_add_u32 v{t0}, v{t1}, 3, v{t0}')
    a(f'v_add_u32 v{t0}, s{S_REG}, v{t0}')
    a(f'v_bfe_u32 v{t1}, v{L}, 3, 1')
    a(f's_and_b32 s{S_T0}, s{S_W}, 1')
    a(f'v_xor_b32 v{t1}, s{S_T0}, v{t1}')
    a(f'v_lshl_add_u32 v{AT}, v{t1}, 6, v{t0}')
    a(f'v_xor_b32 v{t1}, 1, v{t1}')
    a(f'v_lshl_add_u32 v{AT+1}, v{t1}, 6, v{t0}')
    a(f's_lshr_b32 s{S_T0}, s{S_W}, 1')
    a(f's_lshl_b32 s{S_T1}, s{S_RT}, 1')
    a(f's_add_u32 s{S_T1}, s{S_T1}, s{S_T0}')
    a(f's_mul_i32 s{S_SA[0]}, s{S_T1}, {RB_STRIDE}')
    a(f's_xor_b32 s{S_T1}, s{S_T1}, 1')
    a(f's_mul_i32 s{S_SA[1]}, s{S_T1}, {RB_STRIDE}')

def c_unit_dma(a, part, kh, cbp, ldsoff, tag=None):
    a(f's_and_b32 s{S_T0}, s{S_W}, 1')
    if cbp: a(f's_xor_b32 s{S_T0}, s{S_T0}, 1')
    a(f's_lshl_b32 s{S_T1}, s{S_CT}, 1')
    a(f's_add_u32 s{S_T0}, s{S_T0}, s{S_T1}')
    a(f's_lshl_b32 s{S_T0}, s{S_T0}, 15')
    a(f's_lshl_b32 s{S_T1}, s{S_W}, 8')
    a(f's_add_u32 s{S_T0}, s{S_T0}, s{S_T1}')
    if kh: a(f's_add_u32 s{S_T0}, s{S_T0}, 128')
    a(f's_add_u32 m0, s{S_REG}, {ldsoff}')
    for q in range(4):
        a(f'buffer_load_dwordx4 v{VX+q}, {srd(SRD_CIM if part else SRD_CRE)}, s{S_T0} offen offset:{q*1024} lds' + (f' ;@id={tag}' if q == 3 and tag else ''))

def c_unit_read(a, part, kh, cbp, ldsoff):
    for s in range(4):
        p = SEQ.index(('i' if part else 'r', 4*kh + s))
        k, b = breg(p, cbp)
        a(f'ds_read_b128 {rr(k,b,4)}, v{AC+s} offset:{ldsoff}')

def w2_pair_dma(a, n, ldsoff, tag=None):
    a(f's_mul_i32 s{S_T0}, s{S_W}, {22*16*1024}')
    a(f's_lshl_b32 s{S_T1}, s{S_CT}, 7')
    a(f's_add_u32 s{S_T0}, s{S_T0}, s{S_T1}')
    a(f's_add_u32 s{S_T0}, s{S_T0}, {n*16*1024}')
    a(f's_add_u32 m0, s{S_REG}, {ldsoff}')
    for e in range(4):
        a(f'buffer_load_dwordx4 v{V2+e}, {srd(SRD_W2)}, s{S_T0} offen offset:{e*1024} lds' + (f' ;@id={tag}' if e == 3 and tag else ''))

def w2_pair_read(a, n, ldsoff):
    for j in range(2):
        p = SEQ.index(('m', n + j))
        for cbp in range(2):
            k, b = breg(p, cbp)
            for u in range(2):
                a(f'ds_read_b64_tr_b16 {rr(k,b+2*u,2)}, v{AT+cbp} offset:{ldsoff + j*2048 + u*1024}')

S_KS = (45, 46)
def a_load(a, p, sc=''):
    kind, n = SEQ[p]
    slot = RING + 8*(p % RING_N)
    newbase = (p == 0) or (SEQ[p-1][0] != kind) or (n & 3) == 0
    if newbase:
        base = {'m': 64, 'r': 0, 'i': 32}[kind]; mul = 22 if kind == 'm' else 8
        a(f's_mul_i32 s{S_T0}, s{S_W}, {mul*1024}')
        a(f's_add_u32 s{S_T0}, s{S_T0}, {(base + (n & ~3))*1024}')
        a(f's_add_u32 s{S_KS[0]}, s{S_T0}, s{S_SA[0]}')
        a(f's_add_u32 s{S_KS[1]}, s{S_T0}, s{S_SA[1]}')
    for rb in range(2):
        a(f'buffer_load_dwordx4 {vr(slot+4*rb,4)}, v{V_L16}, {srd(SRD_WS)}, s{S_KS[rb]} offen offset:{(n&3)*1024}{sc}')

def stage2_main(a, sc=''):
    for p in range(38):
        slot = RING + 8*(p % RING_N)
        if p == 36:
            a(f'@waitregs {vr(RING, 96)}')
            a('@waitds')
            a(f's_cmp_eq_u32 s{S_W}, 3')
            a('s_cbranch_scc1 L_skip_tail')
        for rb in range(2):
            for cb in range(2):
                k, b = breg(p, cb)
                acc = ACC + 16*(2*rb + cb)
                a(f'v_mfma_f32_32x32x16_bf16 {vr(acc,16)}, {vr(slot+4*rb,4)}, {rr(k,b,4)}, ' + ('0' if p == 0 else vr(acc,16)))
        if p + RING_N < 38: a_load(a, p + RING_N, sc)
    a('L_skip_tail:')

def stage2_final(a, red_base, sc=''):
    L = V_LANE
    t0, t1, t2, t3 = 20, 21, 22, 23
    XV = 48; ST = 64; DS_, B2 = 96, 97; RD = 100
    a(f's_lshr_b32 s{S_T0}, s{S_W}, 1')
    a(f's_lshl_b32 s{S_T1}, s{S_RT}, 1')
    a(f's_add_u32 s{S_T0}, s{S_T0}, s{S_T1}')
    a(f's_and_b32 s{S_T1}, s{S_W}, 1')
    a(f's_lshl_b32 s{S_T2}, s{S_CT}, 1')
    a(f's_add_u32 s{S_T1}, s{S_T1}, s{S_T2}')
    a(f's_lshl_b32 s{S_T1}, s{S_T1}, 6')
    a(f's_lshl_b32 s{S_T2}, s{S_T0}, 15')
    a(f's_add_u32 s{S_T2}, s{S_T2}, s{S_T1}')
    a(f'v_lshrrev_b32 v{t0}, 5, v{L}')
    a(f'v_lshlrev_b32 v{t1}, 14, v{t0}')
    a(f'v_lshl_add_u32 v{t1}, v{V_TAU}, 1, v{t1}')
    for r in range(16):
        if r & 3 == 0: a(f's_add_u32 s{S_T3}, s{S_T2}, {r*1024}')
        a(f'buffer_load_ushort v{XV+r}, v{t1}, {srd(SRD_X)}, s{S_T3} offen offset:{(r&3)*1024}')
    a(f's_lshl_b32 s{S_T3}, s{S_T0}, 8')
    a(f's_add_u32 s{S_T3}, s{S_T3}, {STATS_OFF}')
    a(f'v_lshlrev_b32 v{t2}, 7, v{t0}')
    for q in range(8):
        a(f'buffer_load_dwordx4 {vr(ST+4*q,4)}, v{t2}, {srd(SRD_WS)}, s{S_T3} offen offset:{q*16}{sc}')
    a(f'v_lshl_add_u32 v{t3}, v{V_TAU}, 1, s{S_T1}')
    a(f'global_load_ushort v{DS_}, v{t3}, s[{kp("dskip")}:{kp("dskip")+1}]')
    a(f'global_load_ushort v{B2}, v{t3}, s[{kp("b2")}:{kp("b2")+1}]')
    a('s_barrier')
    for j in range(1, 4):
        a(f's_xor_b32 s{S_T3}, s{S_W}, {j}')
        a(f's_mul_i32 s{S_T3}, s{S_T3}, 12288')
        a(f's_add_u32 s{S_T3}, s{S_T3}, {red_base + (j-1)*4096}')
        a(f'v_add_u32 v{t2}, s{S_T3}, v{V_L16}')
        for q in range(4):
            a(f'ds_write_b128 v{t2}, {vr(ACC+16*j+4*q,4)} offset:{q*1024}')
    a(f'v_lshlrev_b32 v{DS_}, 16, v{DS_}')
    a(f'v_lshlrev_b32 v{B2}, 16, v{B2}')
    for r in range(16):
        a(f'v_lshlrev_b32 v{XV+r}, 16, v{XV+r}')
        a(f'v_sub_f32 v{ST+2*r}, v{XV+r}, v{ST+2*r}')
        a(f'v_add_f32 v{XV+r}, v{XV+r}, v{B2}')
        a(f'v_mul_f32 v{ST+2*r}, v{ST+2*r}, v{ST+2*r+1}')
        a(f'v_add_f32 v{ACC+r}, v{ACC+r}, v{XV+r}')
        a(f'v_fma_f32 v{ACC+r}, v{ST+2*r}, v{DS_}, v{ACC+r}')
    a(f's_mul_i32 s{S_T3}, s{S_W}, 12288')
    a(f's_add_u32 s{S_T3}, s{S_T3}, {red_base}')
    a(f'v_add_u32 v{t2}, s{S_T3}, v{V_L16}')
    a('@waitds')
    a('s_barrier')
    for q in range(4):
        for j in range(3):
            a(f'ds_read_b128 {vr(ACC+16+16*j+4*q,4)}, v{t2} offset:{j*4096 + q*1024}')
    a(f'v_lshlrev_b32 v{t1}, 1, v{t1}')
    a(f's_lshl_b32 s{S_T2}, s{S_T2}, 1')
    for r in range(16):
        a(f'v_add_f32 v{ACC+16+r}, v{ACC+16+r}, v{ACC+32+r}')
        a(f'v_add_f32 v{ACC+r}, v{ACC+r}, v{ACC+48+r}')
        a(f'v_add_f32 v{ACC+r}, v{ACC+r}, v{ACC+16+r}')
        if r & 1 == 0: a(f's_add_u32 s{S_T3}, s{S_T2}, {r*2048}')
        a(f'buffer_store_dword v{ACC+r}, v{t1}, {srd(SRD_OUT)}, s{S_T3} offen offset:{(r&1)*2048}')

def tau(a, t0, t1, t2):
    L = V_LANE
    a(f'v_bfe_u32 v{t0}, v{L}, 2, 1')
    a(f'v_bfe_u32 v{t1}, v{L}, 3, 2')
    a(f'v_and_b32 v{t2}, 3, v{L}')
    a(f'v_lshl_add_u32 v{t2}, v{t1}, 2, v{t2}')
    a(f'v_lshl_add_u32 v{V_TAU}, v{t0}, 4, v{t2}')

def gen_k2(name):
    a = Asm()
    a('s_cmp_ge_u32 s2, 256')
    a(f's_cbranch_scc1 L_{name}_end')
    ts_init(a)
    load_kernargs(a)
    code_prefetch(a, 0, 2, 3, f'L_{name}_end-{name}-64')
    a(f'v_lshrrev_b32 v2, 6, v0')
    a(f'v_and_b32 v{V_LANE}, 63, v0')
    a(f'v_readfirstlane_b32 s{S_W}, v2')
    ids2(a)
    stage1_setup(a)
    tau(a, 20, 21, 22)
    a('s_waitcnt lgkmcnt(0)')
    mk_srd(a, SRD_X, 'x'); mk_srd(a, SRD_WS, 'ws')
    stage2_setup(a, 40960)
    for i in range(10): w2_pair_dma(a, 2*i, i*4096, f'w{i}')
    SC = ' sc1' if opt('sc', 0) else ''
    for p in range(6): a_load(a, p, SC)
    ts(a, 1)
    units = [(part, kh, cb) for part in range(2) for kh in range(2) for cb in range(2)]
    for i in range(10):
        a(f'@wait w{i}')
        w2_pair_read(a, 2*i, i*4096)
        a('@waitds')
        if i < 8: c_unit_dma(a, *units[i], i*4096, f'c{i}')
        elif i == 8: w2_pair_dma(a, 20, i*4096, 'w10')
    ts(a, 2)
    for p in range(6, RING_N): a_load(a, p, SC)
    for i in range(8):
        a(f'@wait c{i}')
        c_unit_read(a, *units[i], i*4096)
    a('@wait w10')
    w2_pair_read(a, 20, 8*4096)
    ts(a, 3)
    stage2_main(a, SC)
    ts(a, 4)
    stage2_final(a, 0)
    ts_store(a, 1)
    a(f'L_{name}_end:')
    a('s_endpgm')
    return post.process(a.lines)

def gen_k1(name):
    a = Asm()
    a('s_cmp_ge_u32 s2, 256')
    a(f's_cbranch_scc1 L_{name}_end')
    ts_init(a)
    load_kernargs(a)
    code_prefetch(a, 0, 2, 3, f'L_{name}_end-{name}-64')
    ids(a)
    stage1_setup(a)
    a('s_waitcnt lgkmcnt(0)')
    ts(a, 20)
    stage1_setup2(a)
    pre = opt('pre', 4)
    if opt('late3a', 0):
        dma_chunk(a, 0)
        ts(a, 21)
        stage1_setup3a(a)
        for kc in range(1, pre):
            dma_chunk(a, kc); ts(a, 21 + kc)
    else:
        stage1_setup3a(a)
        for kc in range(pre):
            dma_chunk(a, kc); ts(a, 21 + kc)
    ts(a, 1)
    stage1_setup3b(a)
    for kc in range(pre, 4):
        dma_chunk(a, kc); ts(a, 21 + kc)
    ts(a, 2)
    stage1_loop(a)
    ts(a, 12)
    stage1_epilogue(a)
    ts_store(a, 0)
    a(f'L_{name}_end:')
    a('s_endpgm')
    return post.process(a.lines)

if __name__ == '__main__':
    sfx = ''
    if len(sys.argv) > 1 and sys.argv[1] == 'ts':
        TSON = True; sfx = '_ts'
    name = 'k1_kernel'
    body = gen_k1(name)
    s = header([(name, (256,1,1), (256,1,1), LDS_TOTAL)]) + kernel_begin(name) + '\n'.join(body) + '\n' + rodata_begin() + descriptor(name, 256, 102, 256)
    open('k1.s', 'w').write(s)
    b2 = gen_k2('k2_kernel')
    s = header([('k1_kernel', (256,1,1), (256,1,1), LDS_TOTAL), ('k2_kernel', (256,1,1), (256,1,1), LDS_TOTAL)])
    s += kernel_begin('k1_kernel') + '\n'.join(body) + '\n' + kernel_begin('k2_kernel') + '\n'.join(b2) + '\n'
    s += rodata_begin() + descriptor('k1_kernel', 256, 102, 256) + '.p2align 6\n' + descriptor('k2_kernel', 512, 102, 256)
    open(os.environ.get('OUT', f'k12{sfx}.s'), 'w').write(s)
```

```python
import re

TRANS = ('v_exp_f32', 'v_log_f32', 'v_rcp_f32', 'v_rsq_f32', 'v_sqrt_f32', 'v_sin_f32', 'v_cos_f32', 'v_rcp_iflag_f32')
REG_RE = re.compile(r'^(-|abs\(|\|)?([vas])(\d+|\[(\d+):(\d+)\])\)?\|?$')

def regs_of(op):
    op = op.strip()
    if op in ('vcc',): return {('s', 106), ('s', 107)}
    if op == 'vcc_lo': return {('s', 106)}
    if op == 'vcc_hi': return {('s', 107)}
    if op == 'exec': return {('s', 126), ('s', 127)}
    if op == 'exec_lo': return {('s', 126)}
    if op == 'exec_hi': return {('s', 127)}
    if op == 'm0': return {('s', 124)}
    m = REG_RE.match(op)
    if not m: return set()
    k = m.group(2)
    if m.group(4) is not None:
        return {(k, i) for i in range(int(m.group(4)), int(m.group(5)) + 1)}
    return {(k, int(m.group(3)))}

def split_ops(s):
    out = []; depth = 0; cur = ''
    for ch in s:
        if ch in '[(': depth += 1
        if ch in '])': depth -= 1
        if ch == ',' and depth == 0:
            out.append(cur.strip()); cur = ''
        else: cur += ch
    if cur.strip(): out.append(cur.strip())
    return out

class I:
    pass

def mfma_passes(mn):
    if '32x32x16' in mn: return 8
    if '16x16x32' in mn: return 4
    if '4x4x4' in mn: return 2
    raise ValueError(mn)

def parse(line):
    t = line.split(';')[0].strip()
    ins = I(); ins.text = line; ins.mn = None
    ins.rd = set(); ins.wr = set(); ins.cls = 'other'; ins.name = None
    m = re.search(r';@id=(\S+)', line)
    if m: ins.name = m.group(1)
    if not t or t.endswith(':') or t.startswith('.'):
        ins.cls = 'label' if t.endswith(':') else 'none'
        return ins
    parts = t.split(None, 1)
    mn = parts[0]; ins.mn = mn
    rest = parts[1] if len(parts) > 1 else ''
    ops = split_ops(rest)
    mods = ''
    if ops:
        lp = ops[-1].split(None, 1)
        if len(lp) > 1 and not lp[0].endswith(':'):
            ops[-1] = lp[0]; mods = lp[1]
    ins.mods = mods; ins.ops = ops
    R = regs_of
    if mn.startswith('@'):
        ins.cls = 'pseudo'; return ins
    if mn.startswith('v_mfma'):
        ins.cls = 'mfma'; ins.passes = mfma_passes(mn)
        ins.D = R(ops[0]); ins.A = R(ops[1]); ins.B = R(ops[2]); ins.C = R(ops[3])
        ins.wr = set(ins.D); ins.rd = ins.A | ins.B | ins.C
    elif mn.startswith('v_'):
        ins.cls = 'valu'
        ins.trans = any(mn.startswith(x) for x in TRANS)
        ins.dpp = '_dpp' in mn or 'quad_perm' in mods or 'row_' in mods
        ins.sdwa = '_sdwa' in mn
        ins.perm = mn.startswith('v_permlane')
        ins.rdlane = mn.startswith('v_readfirstlane') or mn.startswith('v_readlane')
        ins.dot = mn.startswith('v_dot')
        if ins.perm:
            ins.wr = R(ops[0]) | R(ops[1]); ins.rd = set(ins.wr)
        elif mn.startswith(('v_add_co', 'v_sub_co', 'v_addc_co', 'v_subb_co', 'v_subrev_co', 'v_div_scale', 'v_mad_u64')):
            ins.wr = R(ops[0]) | R(ops[1])
            for o in ops[2:]: ins.rd |= R(o)
        else:
            ins.wr = R(ops[0])
            for o in ops[1:]: ins.rd |= R(o)
            if mn.startswith(('v_fmac', 'v_dot2c', 'v_mac', 'v_writelane')) or ins.dpp or ins.sdwa: ins.rd |= R(ops[0])
            if mn.startswith('v_cndmask') and len(ops) == 3: ins.rd |= R('vcc')
            if mn.startswith('v_cmpx'): raise ValueError('no cmpx')
    elif mn.startswith('ds_'):
        ins.cls = 'ds'
        if mn.startswith(('ds_read', 'ds_bpermute', 'ds_permute', 'ds_swizzle')):
            ins.wr = R(ops[0])
            for o in ops[1:]: ins.rd |= R(o)
        else:
            for o in ops: ins.rd |= R(o)
    elif mn.startswith(('buffer_', 'global_')):
        ins.cls = 'vm'
        ins.lds = (' lds' in ' ' + mods) or '_lds_' in mn
        ins.store = 'store' in mn or 'atomic' in mn
        ins.wide = 'store' in mn and ('x4' in mn or 'x3' in mn)
        if mn in ('buffer_wbl2', 'buffer_inv'):
            pass
        elif ins.lds:
            for o in ops: ins.rd |= R(o)
            ins.rd |= R('m0')
        elif 'load' in mn:
            ins.wr = set() if ';@junk' in line else R(ops[0])
            for o in ops[1:]: ins.rd |= R(o)
        else:
            for o in ops: ins.rd |= R(o)
            ins.data = R(ops[0]) if mn.startswith('buffer_') else R(ops[1])
            if 'atomic' in mn and 'sc0' in mods: ins.wr = R(ops[0])
    elif mn.startswith(('s_load', 's_buffer_load', 's_memtime', 's_memrealtime')):
        ins.cls = 'smem'
        ins.wr = R(ops[0])
        for o in ops[1:]: ins.rd |= R(o)
    elif mn.startswith('s_'):
        ins.cls = 'salu'
        if mn.startswith(('s_cmp', 's_cbranch', 's_branch', 's_waitcnt', 's_nop', 's_barrier', 's_endpgm', 's_sleep', 's_setprio', 's_bitcmp')):
            for o in ops: ins.rd |= R(o)
        else:
            ins.wr = R(ops[0]) if ops else set()
            for o in ops[1:]: ins.rd |= R(o)
            if 'saveexec' in mn: ins.wr |= R('exec')
    else:
        raise ValueError('unknown instr: ' + line)
    return ins

def need_states(p, c):
    n = 0
    if p.cls == 'valu':
        wv = {r for r in p.wr if r[0] in 'va'}
        ws = {r for r in p.wr if r[0] == 's'}
        if c.cls == 'mfma' and wv & c.rd: n = max(n, 2)
        if p.dot and wv & (c.rd | c.wr):
            if c.cls == 'valu' and c.mn == p.mn and not (wv & (regs_of(c.ops[1]) | regs_of(c.ops[2]))): pass
            else: n = max(n, 3)
        if c.cls == 'valu':
            if p.trans and wv & c.rd: n = max(n, 1)
            if p.sdwa and wv & (c.rd | c.wr): n = max(n, 1)
            if ws & c.rd: n = max(n, 4 if c.mn.startswith(('v_readlane', 'v_writelane', 'v_div_fmas')) else 2)
            if c.rdlane and wv & c.rd: n = max(n, 1)
            if (c.dpp or c.perm) and wv & c.rd: n = max(n, 2)
        if c.cls == 'vm' and ws & c.rd: n = max(n, 5)
        if c.cls in ('salu', 'smem') and ws & c.rd: n = max(n, 2)
        if c.cls in ('ds', 'vm') and p.trans and wv & c.rd: n = max(n, 1)
    elif p.cls == 'mfma':
        k = {2: 0, 4: 1, 8: 2, 16: 3}[p.passes]
        if c.cls == 'mfma':
            if p.D & (c.A | c.B): n = max(n, (5, 8, 12, 20)[k])
            if p.D & c.C:
                if p.D == c.C and p.passes == c.passes: n = max(n, (2, 0, 0, 0)[k])
                else: n = max(n, (4, 6, 10, 18)[k])
            elif p.D & c.D: n = max(n, (4, 6, 10, 18)[k])
        elif c.cls in ('valu', 'ds', 'vm'):
            if p.D & (c.rd | c.wr): n = max(n, (5, 8, 12, 20)[k])
            if c.cls == 'valu' and p.C & c.wr: n = max(n, (1, 3, 7, 15)[k])
    elif p.cls == 'salu':
        if ('s', 124) in p.wr and c.cls == 'vm' and getattr(c, 'lds', False): n = max(n, 1)
    elif p.cls == 'vm':
        if getattr(p, 'wide', False) and p.data & c.wr: n = max(n, 2 if c.cls == 'valu' else 1)
    return n

def states_of(ins):
    if ins.cls in ('label', 'none', 'pseudo'): return 0
    if ins.mn == 's_nop': return int(ins.ops[0], 0) + 1
    return 1

def process(lines):
    out = []
    vmq = []
    lgq = []
    raw = False
    snaps = {}
    def emit(text):
        out.append(parse(text))
    def wait(vm=None, lg=None):
        parts = []
        if vm is not None and vm < len(vmq):
            v = min(vm, 63); parts.append(f'vmcnt({v})'); del vmq[:len(vmq) - v]
        if lg is not None and lg < len(lgq):
            if any(x.cls == 'smem' for x in lgq): lg = 0
            l = min(lg, 15); parts.append(f'lgkmcnt({l})'); del lgq[:len(lgq) - l]
        if parts: emit('    s_waitcnt ' + ' '.join(parts))
    for line in lines:
        ins = parse(line)
        if ins.cls == 'pseudo':
            if ins.mn == '@raw': raw = True
            elif ins.mn == '@endraw': raw = False
            elif ins.mn == '@wait':
                vm = lg = None
                for nm in ins.ops:
                    for q, which in ((vmq, 'vm'), (lgq, 'lg')):
                        idx = [i for i, x in enumerate(q) if x.name == nm]
                        if idx:
                            n = len(q) - 1 - idx[-1]
                            if which == 'vm': vm = n if vm is None else min(vm, n)
                            else: lg = n if lg is None else min(lg, n)
                wait(vm, lg)
            elif ins.mn == '@waitds': wait(None, 0)
            elif ins.mn == '@waitvm': wait(0, None)
            elif ins.mn == '@waitregs':
                rs = set()
                for o in ins.ops: rs |= regs_of(o)
                vm = lg = None
                for i, x in enumerate(vmq):
                    if x.wr & rs: vm = len(vmq) - 1 - i
                for i, x in enumerate(lgq):
                    if x.wr & rs: lg = len(lgq) - 1 - i
                wait(vm, lg)
            elif ins.mn == '@snap': snaps[ins.ops[0]] = (list(vmq), list(lgq))
            elif ins.mn == '@restore':
                a, b = snaps[ins.ops[0]]; vmq[:] = a; lgq[:] = b
            else: raise ValueError(line)
            continue
        if ins.cls in ('label', 'none'):
            out.append(ins); continue
        if not raw:
            touch = ins.rd | ins.wr
            vm = lg = None
            for i, x in enumerate(vmq):
                if x.wr & touch: vm = len(vmq) - 1 - i
            for i, x in enumerate(lgq):
                if x.wr & touch: lg = len(lgq) - 1 - i
            wait(vm, lg)
            if ins.mn == 's_waitcnt':
                m = re.search(r'vmcnt\((\d+)\)', ins.text)
                if m and int(m.group(1)) < len(vmq): del vmq[:len(vmq) - int(m.group(1))]
                m = re.search(r'lgkmcnt\((\d+)\)', ins.text)
                if m and int(m.group(1)) < len(lgq): del lgq[:len(lgq) - int(m.group(1))]
        need = 0; dist = 0
        for p in reversed(out):
            if dist >= 20: break
            if p.cls not in ('label', 'none'):
                need = max(need, need_states(p, ins) - dist)
            dist += states_of(p)
        while need > 0:
            k = min(need, 16); emit(f'    s_nop {k-1}'); need -= k
        out.append(ins)
        if not raw:
            if ins.cls == 'vm':
                vmq.append(ins)
                if len(vmq) > 63: raise ValueError('more than 63 vm ops outstanding at: ' + line)
            elif ins.cls in ('ds', 'smem'): lgq.append(ins)
    return [x.text for x in out]
```

```python
import sys, math, struct, os
from ag import *
import post
OPT = dict(x.split('=') for x in os.environ.get('OPT', '').split(',') if x)
def opt(k, d): return type(d)(OPT.get(k, d))
def f32(x): return '0x%08x' % struct.unpack('<I', struct.pack('<f', x))[0]

RB = 152 * 1024
QS = 38 * 1024
STATS_OFF = 0xA00000
CARRY_OFF = 0xA10000
EPOCH_OFF = 0xA80000
FLAG_OFF = 0xB00000
TS_OFF = 0xC00000
OOB = 0x7ff00000
X_BASE = 0; RI_BASE = 65536; W_BASE = 106496; MISC = 155648
CSX = MISC
STT = MISC + 2560
SEGZ = MISC + 3584
SEG = MISC + 5632
LDS_TOTAL = 163840
assert SEG + 2048 <= LDS_TOTAL

S_MT, S_G, S_W = 3, 4, 5
SRD_X, SRD_RI, SRD_W1, SRD_WS, SRD_CRE, SRD_CIM, SRD_W2, SRD_OUT = 8, 12, 16, 20, 24, 28, 32, 36
S_XB, S_RIB, S_WB, S_RT = 40, 41, 42, 43
S_MX, S_MRI, S_MW = 44, 45, 46
S_T0, S_T1, S_T2, S_T3 = 47, 48, 49, 50
S_CT = 51
S_TAG = 52
S_TG2 = 54
S_PB = 56
KA = 64
def kp(name): return KA + KARG[name] // 4
S_A2, S_BLK0 = 64, 65
S_F0, S_W2B, S_CB, S_FLG, S_AS, S_AX = 70, 71, 72, 74, 76, 77
S_F1 = 75
S_CNT, S_J = 82, 83
S_POL = 94
SRD_CAR = 84
S_CM = 88
S_CM2 = 92
def srd(r): return f's[{r}:{r+3}]'
def sp(r): return f's[{r}:{r+1}]'
def vr(a, n): return f'v[{a}:{a+n-1}]'
def vp(a): return f'v[{a}:{a+1}]'
def rr(k, b, n): return f'{k}[{b}:{b+n-1}]'

V_LANE = 1
VX = 4; VW = 8; AX = 11; AR = 15; AW = 19
V_PFW, V_PFC = 23, 24
V_L16 = 25; V_I4 = 26; V_ONE = 27
SEL = 28
P_A, P_K, P_A16, P_A128, P_A256, P_PW = 32, 34, 36, 38, 40, 42
V_TAU = 44; V_SIG = 45; V_TS = 46; V_JUNK = 47
F = (48, 72)
TMP = 96
CS = 116
V2 = 136
V_CSA = 139
AC = 140
DRE = 144; DIM = 160; DM = (176, 192, 208)
FQ = 224
TQ = 244; V_K = 248; V_IR = 250
AT = 252
VA = 8
ACC = 144
ARING = 152; RING_N = 13

def cap(fn, *args, **kw):
    b = Asm(); fn(b, *args, **kw); return b.lines

def weave(main, groups, lo=0.0, hi=1.0):
    pos = []; ok = True; out = []
    for l in main:
        t = l.strip()
        if t == '@nf': ok = False; continue
        if t == '@f': ok = True; pos.append(len(out)); continue
        out.append(l)
        if ok: pos.append(len(out))
    n = len(pos); g = len(groups)
    ins = {}
    for i, grp in enumerate(groups):
        k = int((lo + (hi - lo) * (i + 0.5) / g) * n)
        ins.setdefault(pos[min(k, n - 1)], []).extend(grp)
    res = []
    for i, l in enumerate(out):
        res.extend(ins.get(i, []))
        res.append(l)
    res.extend(ins.get(len(out), []))
    return res

def emit(a, lines):
    for l in lines:
        if l.strip() in ('@nf', '@f'): continue
        a(l)

def mk_srd(a, r, name):
    p = kp(name)
    a(f's_mov_b32 s{r}, s{p}\ns_mov_b32 s{r+1}, s{p+1}\ns_mov_b32 s{r+2}, {SIZES[name]}\ns_mov_b32 s{r+3}, 0x20000')

TSON = False
def ts(a, idx):
    if not TSON: return
    a('@nf')
    a('@waitds')
    a('@raw')
    a('s_memrealtime s[98:99]')
    a('s_memtime s[100:101]')
    a('s_waitcnt lgkmcnt(0)')
    a(f'v_writelane_b32 v{V_TS}, s98, {idx}')
    a(f'v_writelane_b32 v{V_TS}, s100, {idx+32}')
    a('@endraw')
    a('@f')
def ts_store(a):
    if not TSON: return
    a('s_waitcnt vmcnt(0)')
    ts(a, 31)
    a(f's_lshl_b32 s98, s2, 2')
    a(f's_add_u32 s98, s98, s{S_W}')
    a(f's_lshl_b32 s98, s98, 8')
    a(f's_add_u32 s98, s98, {TS_OFF}')
    a(f'v_lshlrev_b32 v2, 2, v{V_LANE}')
    a(f'buffer_store_dword v{V_TS}, v2, {srd(SRD_WS)}, s98 offen')

def bf16r(a, d, s):
    a(f'v_cvt_pk_bf16_f32 v{d}, v{s}, v{s}')
    a(f'v_lshlrev_b32 v{d}, 16, v{d}')

def cexp(a, d, zl, zrev, sc, t0, t1):
    a(f'v_mul_f32 v{t0}, {sc}, v{zl}')
    a(f'v_mul_f32 v{t1}, {sc}, v{zrev}')
    a(f'v_exp_f32 v{t0}, v{t0}')
    a(f'v_fract_f32 v{t1}, v{t1}')
    a(f'v_cos_f32 v{d}, v{t1}')
    a(f'v_sin_f32 v{d+1}, v{t1}')
    a(f'v_mul_f32 v{d}, v{d}, v{t0}')
    a(f'v_mul_f32 v{d+1}, -v{d+1}, v{t0}')

def cfma(a, d, m, x, c):
    a(f'v_pk_fma_f32 {vp(d)}, {vp(x)}, {vp(m)}, {vp(c)} op_sel_hi:[1,0,1]')
    a(f'v_pk_fma_f32 {vp(d)}, {vp(x)}, {vp(m)}, {vp(d)} op_sel:[1,1,0] op_sel_hi:[0,1,1] neg_lo:[0,1,0]')

def dma_chunk(kc):
    slot = kc & 3
    g = []
    for q in range(4):
        pre = [f's_add_u32 m0, s{S_MX}, {slot*4096}', f's_add_u32 s{S_F0}, s{S_XB}, {kc*128}'] if q == 0 else []
        g.append(pre + [f'buffer_load_dwordx4 v{VX+q}, {srd(SRD_X)}, s{S_F0} offen offset:{q*1024} lds'])
    for q in range(2):
        pre = [f's_add_u32 m0, s{S_MRI}, {slot*8192}', f's_add_u32 s{S_F0}, s{S_RIB}, {kc*128}'] if q == 0 else []
        g.append(pre + [f'buffer_load_dwordx4 v{VX+q}, {srd(SRD_RI)}, s{S_F0} offen offset:{q*1024} lds'])
    for u in range(3):
        pre = [f's_add_u32 m0, s{S_MW}, {slot*12288}', f's_add_u32 s{S_F0}, s{S_WB}, {kc*64*2752}'] if u == 0 else []
        g.append(pre + [f'buffer_load_dwordx4 v{VW+u}, {srd(SRD_W1)}, s{S_F0} offen offset:{u*1024} lds' + (f' ;@id=dma{kc}' if u == 2 else '')])
    return g

def n_of(p):
    if p < 8: L = 3 * (p >> 1)
    elif p < 16: L = 3 * ((p - 8) >> 1) + 1
    else: L = 3 * ((p - 16) >> 1) + 2
    return 2 * L + (p & 1)
P_OF_N = {n_of(p): p for p in range(22)}
CELLS = [('R', 4, 2), ('R', 0, 2), ('W', 0, 3), ('R', 1, 2), ('W', 1, 3), ('R', 2, 2), ('W', 2, 3), ('R', 3, 2), ('W', 3, 3)]
def pieces_round(r):
    ps = [10] + list(range(10)) if r == 0 else list(range(11, 22))
    pl = [2 * n_of(p) + u for p in ps for u in range(2)]
    res = {}
    for reg, s, cnt in CELLS:
        res[(reg, s)] = pl[:cnt]; pl = pl[cnt:]
    assert not pl
    return res
PR = [pieces_round(0), pieces_round(1)]
def breg(p, cb):
    if p < 11: return 'a', 8 * p + 4 * cb
    if p < 22: return 'v', 48 + 8 * (p - 11) + 4 * cb
    if p < 30: return 'a', 88 + 8 * (p - 22) + 4 * cb
    return 'v', 48 + 8 * (p - 30) + 4 * cb

def w2_dma(r, reg, s):
    g = []; last = None
    pl = PR[r][(reg, s)]
    for e, pi in enumerate(pl):
        pre = []
        if e == 0:
            pre.append(f's_add_u32 m0, s{S_MRI}, {s*8192}' if reg == 'R' else f's_add_u32 m0, s{S_MW}, {s*12288}')
        assert pi - e >= 0
        if pi - e != last:
            pre.append(f's_add_u32 s{S_F0}, s{S_W2B}, {(pi-e)*8192}'); last = pi - e
        g.append(pre + [f'buffer_load_dwordx4 v{V2+e}, {srd(SRD_W2)}, s{S_F0} offen offset:{e*1024} lds' + (f' ;@id=w{r}{reg}{s}' if e == len(pl) - 1 else '')])
    return g
def w2_read(r, reg, s):
    g = []
    pl = PR[r][(reg, s)]
    for e, pi in enumerate(pl):
        p = P_OF_N[pi >> 1]; u = pi & 1
        for cb in range(2):
            k, b = breg(p, cb)
            off = (s * 8192 if reg == 'R' else s * 12288) + e * 1024
            last = e == len(pl) - 1 and cb == 1
            g.append(([f'@wait w{r}{reg}{s}'] if e == 0 and cb == 0 else []) +
                     [f'ds_read_b64_tr_b16 {rr(k,b+2*u,2)}, v{AT + (0 if reg == "R" else 2) + cb} offset:{off}' + (f' ;@id=rd{r}{reg}{s}' if last else '')])
    return g
def c_dma(part, u):
    kh, cb = u >> 1, u & 1
    g = []
    for q in range(4):
        pre = [f's_add_u32 m0, s{S_MX}, {u*4096}', f's_add_u32 s{S_F0}, s{S_CB+cb}, {128*kh}'] if q == 0 else []
        g.append(pre + [f'buffer_load_dwordx4 v{VX+q}, {srd(SRD_CIM if part else SRD_CRE)}, s{S_F0} offen offset:{q*1024} lds' + (f' ;@id=c{part}{u}' if q == 3 else '')])
    return g
def c_read(part, u):
    kh, cb = u >> 1, u & 1
    g = []
    for s in range(4):
        k, b = breg(22 + 8 * part + 4 * kh + s, cb)
        g.append(([f'@wait c{part}{u}'] if s == 0 else []) + [f'ds_read_b128 {rr(k,b,4)}, v{AC+s} offset:{u*4096}' + (f' ;@id=crd{part}{u}' if s == 3 else '')])
    return g
def after(wait, groups):
    return [[f'@wait {wait}'] + groups[0]] + groups[1:]

def ids(a):
    a(f'v_lshrrev_b32 v2, 6, v0')
    a(f'v_and_b32 v{V_LANE}, 63, v0')
    a(f'v_readfirstlane_b32 s{S_W}, v2')
    a(f's_and_b32 s{S_T0}, s2, 7')
    a(f's_lshr_b32 s{S_T1}, s2, 3')
    a(f's_and_b32 s{S_MT}, s{S_T0}, 1')
    a(f's_lshl_b32 s{S_RT}, s{S_MT}, 4')
    a(f's_lshl_b32 s{S_MT}, s{S_MT}, 3')
    a(f's_and_b32 s{S_T2}, s{S_T1}, 7')
    a(f's_add_u32 s{S_MT}, s{S_MT}, s{S_T2}')
    a(f's_lshr_b32 s{S_T3}, s{S_T0}, 1')
    a(f's_lshl_b32 s{S_G}, s{S_T3}, 2')
    a(f's_add_u32 s{S_RT}, s{S_RT}, s{S_G}')
    a(f's_and_b32 s{S_T2}, s{S_T1}, 3')
    a(f's_add_u32 s{S_RT}, s{S_RT}, s{S_T2}')
    a(f's_lshr_b32 s{S_CT}, s{S_T1}, 2')
    a(f's_lshr_b32 s{S_T2}, s{S_T1}, 3')
    a(f's_add_u32 s{S_G}, s{S_G}, s{S_T2}')
    a(f's_lshl_b32 s{S_XB}, s{S_MT}, 17')
    a(f's_lshl_b32 s{S_T0}, s{S_W}, 15')
    a(f's_add_u32 s{S_XB}, s{S_XB}, s{S_T0}')
    a(f's_lshl_b32 s{S_RIB}, s{S_G}, 15')
    a(f's_and_b32 s{S_T0}, s{S_W}, 1')
    a(f's_lshl_b32 s{S_T0}, s{S_T0}, 13')
    a(f's_add_u32 s{S_RIB}, s{S_RIB}, s{S_T0}')
    a(f's_mul_i32 s{S_T0}, s{S_G}, 3')
    a(f's_sub_u32 s{S_PB}, s{S_T0}, s{S_T3}')
    a(f's_mul_i32 s{S_WB}, s{S_W}, {16*2752}')
    a(f's_lshl_b32 s{S_T0}, s{S_PB}, 6')
    a(f's_add_u32 s{S_WB}, s{S_WB}, s{S_T0}')
    a(f's_lshl_b32 s{S_MX}, s{S_W}, 14')
    a(f's_lshl_b32 s{S_MRI}, s{S_W}, 11')
    a(f's_add_u32 s{S_MRI}, s{S_MRI}, {RI_BASE}')
    a(f's_mul_i32 s{S_MW}, s{S_W}, 3072')
    a(f's_add_u32 s{S_MW}, s{S_MW}, {W_BASE}')

def lane_setup(a):
    L = V_LANE
    t0, t1, t2, t3 = TMP, TMP+1, TMP+2, TMP+3
    a(f'v_lshrrev_b32 v{t3}, 5, v{L}')
    a(f'v_lshlrev_b32 v{t0}, 14, v{t3}')
    a(f'v_bfe_u32 v{t1}, v{L}, 3, 2')
    a(f'v_lshl_add_u32 v{t0}, v{t1}, 10, v{t0}')
    a(f'v_and_b32 v{t1}, 7, v{L}')
    a(f'v_lshrrev_b32 v{t2}, 4, v{L}')
    a(f'v_xor_b32 v{t1}, v{t1}, v{t2}')
    a(f'v_lshl_add_u32 v{VX}, v{t1}, 4, v{t0}')
    a(f'v_xor_b32 v{t1}, 4, v{t1}')
    a(f'v_lshl_add_u32 v{VX+1}, v{t1}, 4, v{t0}')
    a(f'v_add_u32 v{VX+1}, 3072, v{VX+1}')
    a(f'v_add_u32 v{VX+2}, {2*3072}, v{VX}')
    a(f'v_add_u32 v{VX+3}, {2*3072}, v{VX+1}')
    a(f'v_and_b32 v{t0}, 31, v{L}')
    a(f'v_lshlrev_b32 v{V_I4}, 4, v{t0}')
    a(f'v_lshl_add_u32 v{TMP+4}, v{t3}, 10, v{V_I4}')
    for u in range(3):
        a(f'v_add_u32 v{t0}, {u*64}, v{L}')
        a(f'v_mul_u32_u24 v{t1}, 171, v{t0}')
        a(f'v_lshrrev_b32 v{t1}, 11, v{t1}')
        a(f'v_mul_u32_u24 v{t2}, {2752-192}, v{t1}')
        a(f'v_lshl_add_u32 v{VW+u}, v{L}, 4, v{t2}')
    a(f'v_lshlrev_b32 v{V_L16}, 4, v{L}')
    a(f'v_bfe_u32 v{t0}, v{L}, 2, 1')
    a(f'v_bfe_u32 v{t1}, v{L}, 3, 2')
    a(f'v_and_b32 v{t2}, 3, v{L}')
    a(f'v_lshl_add_u32 v{t2}, v{t1}, 2, v{t2}')
    a(f'v_lshl_add_u32 v{V_TAU}, v{t0}, 4, v{t2}')
    a(f's_lshl_b32 s{S_T0}, s{S_G}, 6')
    a(f'v_lshl_add_u32 v{TMP+5}, v{V_TAU}, 1, s{S_T0}')
    a(f's_lshl_b32 s{S_T0}, s{S_PB}, 6')
    a(f'v_lshrrev_b32 v{t0}, 3, v{V_I4}')
    a(f'v_add_u32 v{t0}, s{S_T0}, v{t0}')
    for b in range(3):
        a(f'v_add_u32 v{TMP+6+b}, {64*b}, v{t0}')
        a(f'v_min_u32 v{TMP+6+b}, {2*1375}, v{TMP+6+b}')

XR = 48
PL = 56
def first_loads(a):
    a(f's_load_dwordx2 {sp(S_TAG)}, {sp(kp("ws"))}, s{S_T1}')
    mk_srd(a, SRD_X, 'x')
    a(f's_mov_b32 s{S_BLK0}, s{S_PB}')
    a(f'buffer_load_dwordx4 {vr(XR,4)}, v{TMP+4}, {srd(SRD_X)}, s{S_T2} offen')
    a(f'buffer_load_dwordx4 {vr(XR+4,4)}, v{TMP+4}, {srd(SRD_X)}, s{S_T2} offen offset:512')
    mk_srd(a, SRD_W1, 'w1')
    a(f's_cmp_lt_u32 s{S_W}, 2')
    a(f's_cselect_b32 s{SRD_RI}, s{kp("bre")}, s{kp("bim")}')
    a(f's_cselect_b32 s{SRD_RI+1}, s{kp("bre")+1}, s{kp("bim")+1}')
    a(f's_mov_b32 s{SRD_RI+2}, {SIZES["bre"]}\ns_mov_b32 s{SRD_RI+3}, 0x20000')

def param_loads(a):
    for n, nm in enumerate(('lre', 'lim', 'logdt')):
        a(f'global_load_ushort v{PL+n}, v{TMP+5}, {sp(kp(nm))}')
    for b in range(3):
        a(f'global_load_ushort v{PL+3+b}, v{TMP+6+b}, {sp(kp("b1"))}')

def pf1_setup(a):
    L = V_LANE
    t0, t1 = TMP+10, TMP+11
    a(f'v_lshrrev_b32 v{t0}, 3, v{L}')
    a(f'v_and_b32 v{t1}, 7, v{L}')
    a(f'v_lshlrev_b32 v{t1}, 10, v{t1}')
    a(f'v_lshl_add_u32 v{TMP+12}, v{t0}, 7, v{t1}')
    a(f'v_bfe_u32 v{t1}, v{L}, 1, 2')
    a(f'v_lshl_add_u32 v{t0}, v{t0}, 6, v{t1}')
    a(f'v_mul_u32_u24 v{t0}, 2752, v{t0}')
    a(f'v_and_b32 v{t1}, 1, v{L}')
    a(f'v_lshl_add_u32 v{TMP+13}, v{t1}, 7, v{t0}')
    a(f's_and_b32 s{S_T0}, s{S_G}, 3')
    a(f's_lshl_b32 s{S_T0}, s{S_T0}, 2')
    a(f's_add_u32 s{S_T0}, s{S_T0}, s{S_W}')
    a(f's_lshl_b32 s{S_T0}, s{S_T0}, 13')
    a(f's_lshl_b32 s{S_PB+4}, s{S_MT}, 17')
    a(f's_add_u32 s{S_PB+4}, s{S_PB+4}, s{S_T0}')
    a(f's_and_b32 s{S_T0}, s{S_MT}, 6')
    a(f's_lshl_b32 s{S_T0}, s{S_T0}, 12')
    a(f's_lshl_b32 s{S_PB+5}, s{S_G}, 15')
    a(f's_add_u32 s{S_PB+5}, s{S_PB+5}, s{S_T0}')
    a(f's_and_b32 s{S_T0}, s{S_MT}, 7')
    a(f's_lshl_b32 s{S_T0}, s{S_T0}, 1')
    a(f's_and_b32 s{S_T3}, s{S_W}, 1')
    a(f's_add_u32 s{S_T0}, s{S_T0}, s{S_T3}')
    a(f's_mul_i32 s{S_T0}, s{S_T0}, {4*2752}')
    a(f's_lshl_b32 s{S_PB+6}, s{S_PB}, 6')
    a(f's_add_u32 s{S_PB+6}, s{S_PB+6}, s{S_T0}')
def pf1(a, c0, c1):
    m = ((1 << (8 * c1)) - 1) & ~((1 << (8 * c0)) - 1)
    a(f's_mov_b32 exec_lo, {m & 0xffffffff:#x}\ns_mov_b32 exec_hi, {m >> 32:#x}')
    a(f'buffer_load_dword v{V_JUNK}, v{TMP+12}, {srd(SRD_X)}, s{S_PB+4} offen ;@junk')
    a(f'buffer_load_dword v{V_JUNK}, v{TMP+13}, {srd(SRD_W1)}, s{S_PB+6} offen ;@junk')
    a(f'buffer_load_dword v{V_JUNK}, v{TMP+12}, {srd(SRD_RI)}, s{S_PB+5} offen ;@junk')
    a('s_mov_b64 exec, -1')

def addr_setup(a):
    L = V_LANE
    t0, t1, t2, t3 = TMP, TMP+1, TMP+2, TMP+3
    mk_srd(a, SRD_WS, 'ws'); mk_srd(a, SRD_CRE, 'cre'); mk_srd(a, SRD_CIM, 'cim'); mk_srd(a, SRD_W2, 'w2'); mk_srd(a, SRD_OUT, 'out')
    a(f'v_lshlrev_b32 v{t0}, 3, v{V_I4}')
    a(f'v_bfe_u32 v{t1}, v{L}, 1, 3')
    a(f'v_lshrrev_b32 v{t3}, 5, v{L}')
    a(f'v_xor_b32 v{t1}, v{t1}, v{t3}')
    for s in range(4):
        a(f's_add_u32 s{S_T0}, s{S_W}, {s}')
        a(f's_and_b32 s{S_T0}, s{S_T0}, 3')
        a(f's_lshl_b32 s{S_T1}, s{S_T0}, 1')
        a(f'v_xor_b32 v{t2}, s{S_T1}, v{t1}')
        a(f'v_lshl_add_u32 v{t2}, v{t2}, 4, v{t0}')
        a(f'v_add_u32 v{AX+s}, s{S_MX}, v{t2}')
        a(f'v_add_u32 v{AR+s}, {RI_BASE}, v{t2}')
        a(f's_mul_i32 s{S_T1}, s{S_T0}, {16*192}')
        a(f's_add_u32 s{S_T1}, s{S_T1}, {W_BASE}')
        a(f'v_mov_b32 v{AW+s}, s{S_T1}')
    a(f'v_add_u32 v{t0}, s{S_MX}, v{t0}')
    for s in range(4):
        a(f'v_xor_b32 v{t2}, {2*s}, v{t1}')
        a(f'v_lshl_add_u32 v{AC+s}, v{t2}, 4, v{t0}')
    a(f'v_bfe_u32 v{t1}, v{L}, 2, 2')
    a(f'v_lshl_add_u32 v{t0}, v{t3}, 3, v{t1}')
    a(f'v_mul_u32_u24 v{t0}, 192, v{t0}')
    a(f'v_bfe_u32 v{t1}, v{L}, 4, 1')
    a(f'v_lshl_add_u32 v{t0}, v{t1}, 5, v{t0}')
    a(f'v_and_b32 v{t1}, 3, v{L}')
    a(f'v_lshl_add_u32 v{t0}, v{t1}, 3, v{t0}')
    for s in range(4):
        a(f'v_add_u32 v{AW+s}, v{AW+s}, v{t0}')
    a(f'v_lshrrev_b32 v{t0}, 2, v{L}')
    a(f'v_lshrrev_b32 v{t2}, 4, v{L}')
    a(f'v_xor_b32 v{t0}, v{t0}, v{t2}')
    a(f'v_and_b32 v{t0}, 1, v{t0}')
    a(f'v_cmp_eq_u32 vcc, 0, v{t0}')
    a(f'v_mov_b32 v{t1}, 0x3f803f80')
    a(f's_lshl_b32 s{S_T0}, s{S_W}, 1')
    a(f'v_add_u32 v{V_SIG}, s{S_T0}, v{t3}')
    for j in range(4):
        a(f'v_cndmask_b32 v{SEL+j}, 0, v{t1}, vcc')
    a(f'v_cmp_eq_u32 vcc, 0, v{L}')
    a(f'v_mov_b32 v{t1}, {OOB}')
    a(f'v_lshrrev_b32 v{t0}, 3, v{L}')
    a(f'v_cndmask_b32 v{V_ONE}, v{t1}, v{L}, vcc')
    a(f'v_lshlrev_b32 v{t0}, 10, v{t0}')
    a(f'v_bfe_u32 v{t1}, v{L}, 4, 1')
    a(f'v_lshlrev_b32 v{t1}, 2, v{t1}')
    a(f'v_and_b32 v{t2}, 7, v{L}')
    a(f'v_xor_b32 v{t1}, v{t1}, v{t2}')
    a(f'v_lshl_add_u32 v{V2}, v{t1}, 4, v{t0}')
    for e in range(1, 3):
        a(f'v_add_u32 v{V2+e}, {e*7168}, v{V2}')
    a(f'v_bfe_u32 v{t1}, v{L}, 2, 2')
    a(f'v_lshl_add_u32 v{t0}, v{t3}, 2, v{t1}')
    a(f'v_lshlrev_b32 v{t0}, 7, v{t0}')
    a(f'v_and_b32 v{t1}, 1, v{L}')
    a(f'v_lshl_add_u32 v{t0}, v{t1}, 5, v{t0}')
    a(f'v_bfe_u32 v{t1}, v{L}, 4, 1')
    a(f'v_lshl_add_u32 v{t0}, v{t1}, 4, v{t0}')
    a(f'v_bfe_u32 v{t1}, v{L}, 1, 1')
    a(f'v_lshl_add_u32 v{t0}, v{t1}, 3, v{t0}')
    a(f'v_bfe_u32 v{t1}, v{L}, 3, 1')
    a(f's_and_b32 s{S_T0}, s{S_W}, 1')
    a(f'v_xor_b32 v{t1}, s{S_T0}, v{t1}')
    a(f'v_lshl_add_u32 v{t2}, v{t1}, 6, v{t0}')
    a(f'v_add_u32 v{AT}, s{S_MRI}, v{t2}')
    a(f'v_add_u32 v{AT+2}, s{S_MW}, v{t2}')
    a(f'v_xor_b32 v{t2}, 64, v{t2}')
    a(f'v_add_u32 v{AT+1}, s{S_MRI}, v{t2}')
    a(f'v_add_u32 v{AT+3}, s{S_MW}, v{t2}')
    a(f's_lshl_b32 s{S_T1}, s{S_CT}, 1')
    a(f's_add_u32 s{S_T1}, s{S_T1}, s{S_T0}')
    a(f's_lshl_b32 s{S_T1}, s{S_T1}, 15')
    a(f's_lshl_b32 s{S_T2}, s{S_W}, 8')
    a(f's_add_u32 s{S_CB}, s{S_T1}, s{S_T2}')
    a(f's_xor_b32 s{S_CB+1}, s{S_CB}, {1<<15}')
    a(f's_mul_i32 s{S_W2B}, s{S_W}, {352*1024}')
    a(f's_lshl_b32 s{S_T1}, s{S_CT}, 7')
    a(f's_add_u32 s{S_W2B}, s{S_W2B}, s{S_T1}')
    a(f's_lshl_b32 s{S_T0}, s{S_MT}, 2')
    a(f's_add_u32 s{S_T0}, s{S_T0}, s{S_W}')
    a(f's_mul_i32 s{S_A2}, s{S_T0}, {RB}')
    a(f's_lshr_b32 s{S_T1}, s{S_G}, 2')
    a(f's_mul_i32 s{S_T2}, s{S_T1}, {QS}')
    a(f's_add_u32 s{S_A2}, s{S_A2}, s{S_T2}')
    a(f's_and_b32 s{S_T2}, s{S_G}, 3')
    a(f's_lshl_b32 s{S_T3}, s{S_T2}, 11')
    a(f's_add_u32 s{S_A2}, s{S_A2}, s{S_T3}')
    a(f's_lshr_b32 s{S_T3}, s{S_T0}, 1')
    a(f's_lshl_b32 s{S_T3}, s{S_T3}, 2')
    a(f's_add_u32 s{S_T3}, s{S_T3}, s{S_T1}')
    a(f's_lshl_b32 s{S_FLG}, s{S_T3}, 7')
    a(f's_and_b32 s{S_T3}, s{S_T0}, 1')
    a(f's_lshl_b32 s{S_T3}, s{S_T3}, 2')
    a(f's_add_u32 s{S_T3}, s{S_T3}, s{S_T2}')
    a(f's_lshl_b32 s{S_T3}, s{S_T3}, 2')
    a(f's_add_u32 s{S_FLG}, s{S_FLG}, s{S_T3}')
    a(f's_add_u32 s{S_FLG}, s{S_FLG}, {FLAG_OFF}')
    a(f's_lshl_b32 s{S_T0}, s{S_RT}, 2')
    a(f's_add_u32 s{S_T0}, s{S_T0}, s{S_W}')
    a(f's_lshl_b32 s{S_T0}, s{S_T0}, 7')
    a(f's_add_u32 s{S_T0}, s{S_T0}, {FLAG_OFF}')
    a(f's_add_u32 s{S_POL}, s{kp("ws")}, s{S_T0}')
    a(f's_addc_u32 s{S_POL+1}, s{kp("ws")+1}, 0')
    a(f's_mov_b32 s{SRD_CAR}, s{kp("ws")}\ns_mov_b32 s{SRD_CAR+1}, s{kp("ws")+1}')
    a(f's_lshl_b32 s{S_T0}, s{S_G}, 13')
    a(f's_add_u32 s{SRD_CAR+2}, s{S_T0}, {CARRY_OFF + 8192}')
    a(f's_mov_b32 s{SRD_CAR+3}, 0x20000')
    a(f's_lshl_b32 s{S_T0}, s{S_W}, 2')
    a(f's_add_u32 s{S_T0}, s{S_T0}, {CSX}')
    a(f'v_add_u32 v{V_CSA}, s{S_T0}, v{V_I4}')
    for r in (0, 1, 2, 4, 5, 6, 11, 15, 19):
        a(f'v_mov_b32 v{FQ+r}, 0')
    a(f'v_lshlrev_b32 v{t0}, 3, v0')
    a(f'v_add_u32 v{t0}, {SEGZ}, v{t0}')
    a(f'ds_write_b64 v{t0}, {vp(FQ)}')
    a(f'v_lshlrev_b32 v{V_PFW}, 10, v{L}')
    a(f'v_lshrrev_b32 v{t0}, 1, v{L}')
    a(f'v_lshlrev_b32 v{t0}, 10, v{t0}')
    a(f'v_and_b32 v{t1}, 1, v{L}')
    a(f'v_lshl_add_u32 v{V_PFC}, v{t1}, 7, v{t0}')

def pf2_groups():
    g = []
    g.append([f's_and_b32 s{S_F1}, s{S_RT}, 3', f's_mul_i32 s{S_F1}, s{S_F1}, {88*1024}', f's_add_u32 s{S_F1}, s{S_F1}, s{S_W2B}',
              f'buffer_load_dword v{V_JUNK}, v{V_PFW}, {srd(SRD_W2)}, s{S_F1} offen ;@junk'])
    g.append([f's_add_u32 s{S_F1}, s{S_F1}, {24*1024}',
              f'buffer_load_dword v{V_JUNK}, v{V_PFW}, {srd(SRD_W2)}, s{S_F1} offen ;@junk'])
    g.append([f's_bitcmp1_b32 s{S_RT}, 1', f's_cselect_b32 s{S_PB}, s{SRD_CIM}, s{SRD_CRE}', f's_cselect_b32 s{S_PB+1}, s{SRD_CIM+1}, s{SRD_CRE+1}'])
    g.append([f's_mov_b32 s{S_PB+2}, {SIZES["cre"]}', f's_mov_b32 s{S_PB+3}, 0x20000', f's_bitcmp1_b32 s{S_RT}, 0',
              f's_cselect_b32 s{S_F1}, s{S_CB}, s{S_CB+1}'])
    g.append([f'buffer_load_dword v{V_JUNK}, v{V_PFC}, {srd(S_PB)}, s{S_F1} offen ;@junk'])
    return g

def row_stats(a):
    s, q = TMP, TMP+1
    t = list(range(TMP+2, TMP+10))
    a(f's_mov_b32 s{S_T0}, 0x3f803f80')
    for j in range(8):
        a(f'v_dot2_f32_bf16 v{s}, v{XR+j}, s{S_T0}, ' + ('0' if j == 0 else f'v{s}'))
        a(f'v_dot2_f32_bf16 v{q}, v{XR+j}, v{XR+j}, ' + ('0' if j == 0 else f'v{q}'))
    a(f's_mul_i32 s{S_TAG}, s{S_TAG}, 0x0019660d')
    a(f's_add_u32 s{S_TAG}, s{S_TAG}, 0x3c6ef35f')
    a(f's_mul_i32 s{S_TAG+1}, s{S_TAG+1}, 0x41c64e6d')
    for n in (8, 4, 2, 1):
        a(f'v_add_f32_dpp v{s}, v{s}, v{s} row_ror:{n} row_mask:0xf bank_mask:0xf')
        a(f'v_add_f32_dpp v{q}, v{q}, v{q} row_ror:{n} row_mask:0xf bank_mask:0xf')
        if n == 8: a(f's_add_u32 s{S_TAG+1}, s{S_TAG+1}, 0x00003039')
        if n == 4: a(f's_or_b32 s{S_TAG+1}, s{S_TAG+1}, 0x80000000')
        if n == 2: a(f's_mov_b32 s{S_TG2}, s{S_TAG}')
    a(f'v_mov_b32 v{t[0]}, v{s}')
    a(f'v_mov_b32 v{t[1]}, v{q}')
    a(f's_mov_b32 s{S_TG2+1}, s{S_TAG}')
    a(f'v_permlane16_swap_b32 v{s}, v{t[0]}')
    a(f'v_permlane16_swap_b32 v{q}, v{t[1]}')
    a(f'v_add_f32 v{s}, v{s}, v{t[0]}')
    a(f'v_add_f32 v{q}, v{q}, v{t[1]}')
    mean, var, mb, d, rinv = s, q, t[0], t[1], t[2]
    G = XR
    a(f'v_mul_f32 v{mean}, {f32(1/512)}, v{s}')
    a(f'v_mul_f32 v{var}, {f32(1/512)}, v{q}')
    a(f'v_fma_f32 v{var}, -v{mean}, v{mean}, v{var}')
    a(f'v_max_f32 v{var}, 0, v{var}')
    bf16r(a, d, var)
    a(f'v_add_f32 v{d}, {f32(1e-5)}, v{d}')
    bf16r(a, d, d)
    a(f'v_sqrt_f32 v{d}, v{d}')
    a(f'v_mov_b32 v{G+2}, s{S_TAG}')
    a(f'v_cvt_pk_bf16_f32 v{G}, v{mean}, v{d}')
    a(f'v_and_b32 v{d}, 0xffff0000, v{G}')
    a(f'v_lshlrev_b32 v{mb}, 16, v{G}')
    a(f'v_rcp_f32 v{rinv}, v{d}')
    a(f'v_sub_f32 v{t[3]}, v{mean}, v{mb}')
    a(f'v_mul_f32 v{t[4]}, v{var}, v{rinv}')
    a(f'v_mul_f32 v{t[3]}, v{t[3]}, v{rinv}')
    a(f'v_mul_f32 v{t[4]}, v{t[4]}, v{rinv}')
    bf16r(a, t[4], t[4])
    a(f'v_add_f32 v{t[4]}, {f32(1e-5)}, v{t[4]}')
    bf16r(a, t[4], t[4])
    a(f'v_sqrt_f32 v{t[4]}, v{t[4]}')
    a(f'v_mov_b32 v{G+3}, s{S_TAG+1}')
    a(f'v_cvt_pk_bf16_f32 v{G+1}, v{t[3]}, v{t[4]}')
    a(f'v_cmp_eq_u32 vcc, 0, v{V_I4}')
    a(f'v_lshrrev_b32 v{t[5]}, 1, v{V_LANE}')
    a(f's_lshl_b32 s{S_T0}, s{S_MT}, 4')
    a(f's_add_u32 s{S_T0}, s{S_T0}, s{S_G}')
    a(f'v_cndmask_b32 v{t[5]}, v{V_ONE}, v{t[5]}, vcc')
    a(f's_lshl_b32 s{S_T0}, s{S_T0}, 2')
    a(f's_add_u32 s{S_T0}, s{S_T0}, s{S_W}')
    a(f's_lshl_b32 s{S_T0}, s{S_T0}, 5')
    a(f's_add_u32 s{S_T0}, s{S_T0}, {STATS_OFF}')
    a(f'buffer_store_dwordx4 {vr(G,4)}, v{t[5]}, {srd(SRD_WS)}, s{S_T0} offen sc1')

def params(a):
    t0, t1, t2, zl, zv = range(TMP, TMP+5)
    lre, lim, ldt = PL, PL+1, PL+2
    a(f'v_lshlrev_b32 v{ldt}, 16, v{ldt}')
    a(f'v_mul_f32 v{ldt}, {f32(math.log2(math.e))}, v{ldt}')
    a(f'v_exp_f32 v{ldt}, v{ldt}')
    a(f'v_lshlrev_b32 v{lre}, 16, v{lre}')
    a(f'v_lshlrev_b32 v{lim}, 16, v{lim}')
    bf16r(a, ldt, ldt)
    a(f'v_mul_f32 v{zl}, v{ldt}, v{lre}')
    a(f'v_mul_f32 v{zv}, v{ldt}, v{lim}')
    a(f'v_mul_f32 v{zl}, {f32(math.log2(math.e))}, v{zl}')
    a(f'v_mul_f32 v{zv}, {f32(1/(2*math.pi))}, v{zv}')
    cexp(a, P_A, zl, zv, '1.0', t0, t1)
    cexp(a, P_A16, zl, zv, f32(16.0), t0, t1)
    cexp(a, P_A128, zl, zv, f32(128.0), t0, t1)
    cexp(a, P_A256, zl, zv, f32(256.0), t0, t1)
    a(f'v_lshlrev_b32 v{t2}, 4, v{V_SIG}')
    a(f'v_cvt_f32_u32 v{t2}, v{t2}')
    cexp(a, P_PW, zl, zv, f'v{t2}', t0, t1)
    a(f'v_mul_f32 v{t0}, v{lre}, v{lre}')
    a(f'v_fma_f32 v{t0}, v{lim}, v{lim}, v{t0}')
    a(f'v_rcp_f32 v{t0}, v{t0}')
    a(f'v_add_f32 v{t1}, -1.0, v{P_A}')
    a(f'v_add_f32 v{t0}, v{t0}, v{t0}')
    a(f'v_mul_f32 v{P_K}, v{t1}, v{lre}')
    a(f'v_fma_f32 v{P_K}, -v{P_A+1}, v{lim}, v{P_K}')
    a(f'v_mul_f32 v{P_K+1}, -v{P_A+1}, v{lre}')
    a(f'v_fma_f32 v{P_K+1}, -v{t1}, v{lim}, v{P_K+1}')
    a(f'v_mul_f32 v{P_K}, v{P_K}, v{t0}')
    a(f'v_mul_f32 v{P_K+1}, v{P_K+1}, v{t0}')
    a(f'v_cmp_gt_u32 vcc, 32, v{V_LANE}')
    for b in range(3):
        a(f'v_lshl_or_b32 v{PL+3+b}, v{PL+3+b}, 16, v{PL+3+b}')
    for b in range(3):
        a(f'v_cndmask_b32 v{FQ+8+4*b+2}, 0, v{PL+3+b}, vcc')

def frag_reads(kc, s):
    slot = kc & 3; f = F[s & 1]
    r = []
    r.append(f'ds_read_b128 {vr(f,4)}, v{AX+s} offset:{slot*4096}')
    r.append(f'ds_read_b128 {vr(f+4,4)}, v{AR+s} offset:{slot*8192}')
    r.append(f'ds_read_b128 {vr(f+8,4)}, v{AR+s} offset:{slot*8192+4096}')
    for b in range(3):
        for u in range(2):
            r.append(f'ds_read_b64_tr_b16 {vr(f+12+4*b+2*u,2)}, v{AW+s} offset:{slot*12288 + 4*u*192 + 64*b}')
    return r

def step_mfmas(kc, s):
    f = F[s & 1]
    first = (kc == 0 and s == 0)
    def c(acc, n, z): return '0' if z else vr(acc, n)
    m = []
    m.append(f'v_mfma_f32_32x32x16_bf16 {vr(DRE,16)}, {vr(f,4)}, {vr(f+4,4)}, {c(DRE,16,first)}')
    m.append(f'v_mfma_f32_32x32x16_bf16 {vr(DIM,16)}, {vr(f,4)}, {vr(f+8,4)}, {c(DIM,16,first)}')
    for b in range(3):
        m.append(f'v_mfma_f32_32x32x16_bf16 {vr(DM[b],16)}, {vr(f+12+4*b,4)}, {vr(f,4)}, {c(DM[b],16,first)}')
    if s == 0:
        for b in range(5):
            m.append(f'v_mfma_f32_16x16x32_bf16 {vr(CS+4*b,4)}, {vr(SEL,4)}, {vr(f+4+4*b,4)}, {c(CS+4*b,4,kc==0)}')
    return m

SG = TMP
def stats_gather_issue():
    return [[f's_lshr_b32 s{S_F1}, s{S_XB}, 6', f's_add_u32 s{S_F1}, s{S_F1}, {STATS_OFF}', f'v_lshlrev_b32 v{TMP+4}, 4, v{V_TAU}'],
            [f'buffer_load_dwordx4 {vr(SG,4)}, v{TMP+4}, {srd(SRD_WS)}, s{S_F1} offen sc1']]
def stats_process():
    c1 = -2.0 * math.sqrt(2.0 / math.pi) * math.log2(math.e)
    c2 = c1 * 0.044715
    mb, d, m2, d2, rinv, rho, nmu, t = range(TMP+5, TMP+13)
    g = []
    g.append([f'v_cmp_ne_u64 {sp(S_CM)}, {vp(SG+2)}, {sp(S_TAG)}'])
    g.append([f's_cmp_lg_u64 {sp(S_CM)}, 0', 's_cbranch_scc1 L_slow_st', 'L_ok_st:'])
    L = [f'v_and_b32 v{d}, 0xffff0000, v{SG}',
         f'v_and_b32 v{d2}, 0xffff0000, v{SG+1}',
         f'v_rcp_f32 v{rinv}, v{d}',
         f'v_mul_f32 v{V_IR}, v{d}, v{d2}',
         f'v_lshlrev_b32 v{mb}, 16, v{SG}',
         f'v_rcp_f32 v{rho}, v{V_IR}',
         f'v_lshlrev_b32 v{m2}, 16, v{SG+1}',
         f's_lshl_b32 s{S_F1}, s{S_W}, 8',
         f's_add_u32 s{S_F1}, s{S_F1}, {STT}',
         f'v_lshl_add_u32 v{t}, v{V_TAU}, 2, s{S_F1}',
         f'ds_write_b32 v{t}, v{rinv}',
         f'v_fma_f32 v{nmu}, -v{m2}, v{d}, -v{mb}',
         f'v_cvt_pk_bf16_f32 v{TQ+3}, -v{mb}, -v{mb}',
         f'v_cvt_pk_bf16_f32 v{TQ}, v{nmu}, v{nmu}',
         f'v_cvt_pk_bf16_f32 v{d}, v{V_IR}, v{V_IR}',
         f'v_lshlrev_b32 v{m2}, 16, v{TQ}',
         f'v_lshlrev_b32 v{d}, 16, v{d}',
         f'v_sub_f32 v{m2}, v{nmu}, v{m2}',
         f'v_sub_f32 v{d}, v{V_IR}, v{d}',
         f'v_cvt_pk_bf16_f32 v{TQ+1}, v{m2}, v{m2}',
         f'v_cvt_pk_bf16_f32 v{TQ+2}, v{V_IR}, v{d}',
         f'v_mul_f32 v{V_K}, {f32(c1)}, v{rho}',
         f'v_mul_f32 v{d}, v{rho}, v{rho}',
         f'v_mul_f32 v{V_K+1}, {f32(c2)}, v{rho}',
         f'v_mul_f32 v{V_K+1}, v{V_K+1}, v{d}',
         f'v_lshrrev_b32 v{V_IR+1}, 5, v{V_LANE}',
         f'v_lshl_add_u32 v{V_IR+1}, v{V_IR+1}, 6, s{S_F1}',
         f'v_lshrrev_b32 v{d}, 5, v{V_LANE}',
         f'v_lshl_add_u32 v{d}, v{d}, 3, v{V_I4}',
         f'v_add_u32 v{TMP+19}, {CSX}, v{d}']
    g += [[x] for x in L]
    return g
def slow_stats(a):
    a('L_slow_st:')
    a(f's_mov_b32 s{S_CNT}, 0')
    a('L_slow_st2:')
    a(f'buffer_load_dwordx4 {vr(SG,4)}, v{TMP+4}, {srd(SRD_WS)}, s{S_F1} offen sc1')
    a(f's_add_u32 s{S_CNT}, s{S_CNT}, 1')
    a('s_waitcnt vmcnt(0)')
    a(f'v_cmp_ne_u64 {sp(S_CM)}, {vp(SG+2)}, {sp(S_TAG)}')
    a(f's_cmp_ge_u32 s{S_CNT}, 20000')
    a('s_cbranch_scc1 L_ok_st')
    a('s_nop 1')
    a(f's_cmp_lg_u64 {sp(S_CM)}, 0')
    a('s_cbranch_scc1 L_slow_st2')
    a('s_branch L_ok_st')

def cs_write():
    return [[f'ds_write_b32 v{V_CSA}, v{CS+4*b} offset:{b*512}'] for b in range(5)]
CORD = (2, 0, 1, 3, 4)
def cs_read():
    return [f'ds_read_b64 {vp(TMP+2*b)}, v{TMP+19} offset:{b*512}' for b in CORD]
def cs_prep(b):
    s, t = TMP + 2*b, TMP + 2*b + 1
    q = FQ + 4*b + (3 if b < 2 else 0)
    L = [f'v_add_f32 v{s}, v{s}, v{t}', f'v_cvt_pk_bf16_f32 v{t}, v{s}, v{s}', f'v_lshlrev_b32 v{t}, 16, v{t}',
         f'v_sub_f32 v{t}, v{s}, v{t}', f'v_cvt_pk_bf16_f32 v{q}, v{s}, v{t}']
    if b >= 2: L.append(f'v_cvt_pk_bf16_f32 v{q+1}, v{s}, v{t}')
    return L
def corr_mfma(b):
    D = (DRE, DIM) [b] if b < 2 else DM[b-2]
    A, B = (TQ, FQ + 4*b) if b < 2 else (FQ + 4*b, TQ)
    return f'v_mfma_f32_32x32x16_bf16 {vr(D,16)}, {vr(A,4)}, {vr(B,4)}, {vr(D,16)}'

def cost(l):
    t = l.strip()
    if t.startswith('@') or t.endswith(':'): return 0
    if t.startswith('ds_read_b128'): return 12
    if t.startswith('ds_'): return opt('ctr', 8)
    if t.startswith('buffer_'): return 16
    if t.startswith(post.TRANS): return 8
    return 4
def pack_step(a, mf, reads, extra, first_slot=0):
    reads = list(reads)
    n = len(mf)
    for i, m in enumerate(mf):
        a(m)
        room = (24 if '32x32' in m else 8)
        if i < first_slot: continue
        while reads and room >= cost(reads[0]):
            room -= cost(reads[0]); a(reads.pop(0))
        while not reads and extra and room > opt('minroom', 4):
            g = extra.pop(0)
            for l in g: room -= cost(l); a(l)
    for r in reads: a(r)

def stage1_loop(a, pre):
    for r in frag_reads(0, 0): a(r)
    for kc in range(8):
        ex = []
        if kc == 0:
            for c in range(pre, 4): ex += dma_chunk(c)
        elif kc + 3 < 8: ex += dma_chunk(kc + 3)
        else:
            s = kc - 5
            ex += c_dma(0, s) + w2_dma(0, 'R', s) + w2_dma(0, 'W', s)
        if opt('pf2', 1) and kc == opt('pf2c', 1): ex += pf2_groups()
        if kc == 4: ex += w2_dma(0, 'R', 4)
        if kc == opt('sgc', 4): ex += stats_gather_issue()
        if kc == 6: ex = weave_groups(ex, stats_process())
        nst = 4 if kc < 7 else 3
        per = [ex[len(ex) * s // nst: len(ex) * (s + 1) // nst] for s in range(nst)] + [[]]
        for s in range(4):
            mf = step_mfmas(kc, s)
            q = per[s]
            if kc == 7 and s == 1: q = cs_write() + q
            if opt('w1', 1) and not (kc == 0 and s == 0): a('@waitds')
            if s < 3:
                pack_step(a, mf, frag_reads(kc, s + 1), q)
                for g in q:
                    for l in g: a(l)
            else:
                a(mf[0])
                a('@waitds')
                if kc < 7: a(f'@wait dma{kc+1}')
                a('s_barrier')
                emit(a, cap(ts, 4 + kc))
                if kc < 7:
                    rd = frag_reads(kc + 1, 0)
                    a(rd[0]); a(rd[1])
                    pack_step(a, mf[1:], rd[2:], q)
                    for g in q:
                        for l in g: a(l)
                else:
                    rd = cs_read()
                    a(rd[0]); a(rd[1])
                    a(mf[2]); a(rd[2]); a(rd[3]); a(rd[4])
                    a(mf[1])
                    for l in cs_prep(2): a(l)
                    a(mf[3])
                    for l in cs_prep(0): a(l)
                    a(mf[4])
                    for l in cs_prep(1): a(l)
                    a(corr_mfma(2))
                    for l in cs_prep(3) + cs_prep(4): a(l)

def weave_groups(x, y):
    res = []; i = j = 0
    while i < len(x) or j < len(y):
        if j >= len(y) or (i < len(x) and i * len(y) <= j * len(x)):
            res.append(x[i]); i += 1
        else:
            res.append(y[j]); j += 1
    return res

U = 48; GT = 80; RV = 96; GA = 96; LC = 128; EE = 130; ET = 132
def gelu(a, b, mf=()):
    D = DM[b]; mf = list(mf)
    for j in range(0, 16, 2): a(f'v_pk_mul_f32 {vp(GT+j)}, {vp(D+j)}, {vp(D+j)}')
    for j in range(0, 16, 2): a(f'v_pk_fma_f32 {vp(GT+j)}, {vp(GT+j)}, {vp(V_K)}, {vp(V_K)} op_sel:[0,1,0] op_sel_hi:[1,1,0]')
    for j in range(0, 16, 2): a(f'v_pk_mul_f32 {vp(GT+j)}, {vp(GT+j)}, {vp(D+j)}')
    for j in range(16):
        if j % 4 == 0 and j < 12 and mf: a(mf.pop(0))
        a(f'v_exp_f32 v{GT+j}, v{GT+j}')
    for j in range(0, 16, 2): a(f'v_pk_fma_f32 {vp(GT+j)}, {vp(GT+j)}, {vp(V_IR)}, {vp(V_IR)} op_sel_hi:[1,0,0]')
    for j in range(16):
        if j % 4 == 0 and j < 12 and mf: a(mf.pop(0))
        a(f'v_rcp_f32 v{GT+j}, v{GT+j}')
    for j in range(0, 16, 2): a(f'v_pk_mul_f32 {vp(GT+j)}, {vp(GT+j)}, {vp(D+j)}')
    a('@nf')
    if b == 0:
        a(f's_mov_b32 s{S_T0}, s{S_A2}')
    else:
        a(f's_add_u32 s{S_T0}, s{S_A2}, {8*b*1024}')
        if b == 1: a(f's_cmp_eq_u32 s{S_G}, 15')
        else:
            a(f's_and_b32 s{S_T1}, s{S_G}, 3')
            a(f's_cmp_eq_u32 s{S_T1}, 3')
        a(f's_cselect_b32 s{S_T0}, {OOB}, s{S_T0}')
    for j in range(4): a(f'v_cvt_pk_bf16_f32 v{D+j}, v{GT+2*j}, v{GT+2*j+1}')
    a(f'buffer_store_dwordx4 {vr(D,4)}, v{V_L16}, {srd(SRD_WS)}, s{S_T0} offen sc1')
    for j in range(4, 8): a(f'v_cvt_pk_bf16_f32 v{D+j}, v{GT+2*j}, v{GT+2*j+1}')
    a(f'buffer_store_dwordx4 {vr(D+4,4)}, v{V_L16}, {srd(SRD_WS)}, s{S_T0} offen offset:1024 sc1 ;@id=h{b}')
    a('@f')

def seg_u(a):
    for r in range(16):
        o = r & 1; e = r & ~1; u = U + 2*r
        a(f'v_pk_mul_f32 {vp(u)}, {vp(DRE+e)}, {vp(P_K)} op_sel:[{o},0] op_sel_hi:[{o},1] neg_hi:[0,1]')
        a(f'v_pk_fma_f32 {vp(u)}, {vp(DIM+e)}, {vp(P_K)}, {vp(u)} op_sel:[{o},1,0] op_sel_hi:[{o},0,1] neg_lo:[0,1,0] neg_hi:[0,1,0]')
        a(f'v_pk_mul_f32 {vp(u)}, {vp(u)}, {vp(RV+e)} op_sel:[0,{o}] op_sel_hi:[1,{o}]')
        if r == 0: prev = u
        else:
            cur = EE if (r & 1) else LC
            cfma(a, cur, P_A, prev, u)
            prev = cur
    assert prev == EE

def seg_x(a):
    t0, t1 = ET, ET+1
    a(f'v_lshrrev_b32 v{t0}, 1, v{V_I4}')
    a(f'v_lshl_add_u32 v{t0}, v{V_SIG}, 8, v{t0}')
    a(f'v_add_u32 v{t0}, {SEG - 7*256}, v{t0}')
    a(f'ds_write_b64 v{t0}, {vp(EE)} offset:{7*256}')
    a(f'v_cmp_eq_u32 vcc, 7, v{V_SIG}')
    a(f'v_mov_b32 v{t1}, {OOB}')
    a(f's_lshl_b32 s{S_T0}, s{S_MT}, 9')
    a(f's_sub_u32 s{S_T3}, s{SRD_CAR+2}, s{S_T0}')
    a(f'v_cndmask_b32 v{t1}, v{t1}, v{V_I4}, vcc')
    a(f's_sub_u32 s{S_T0}, s{S_T3}, 512')
    a('@waitds')
    a('s_barrier')
    for j in range(7):
        a(f'ds_read_b64 {vp(RV+2*j)}, v{t0} offset:{j*256}')
    a(f'v_mov_b32 v{RV+18}, s{S_TAG}\nv_mov_b32 v{RV+19}, s{S_TAG+1}')
    for j in range(1, 7):
        cfma(a, LC if j == 6 else RV+2*j, P_A16, RV+2*j-2, RV+2*j)
    cfma(a, RV+16, P_A16, LC, EE)
    a(f'buffer_store_dwordx4 {vr(RV+16,4)}, v{t1}, {srd(SRD_CAR)}, s{S_T0} offen sc1')

def gather_loads(a):
    for j in range(8):
        a(f'buffer_load_dwordx4 {vr(GA+4*j,4)}, v{ET+2}, {srd(SRD_CAR)}, s{S_T2 if j >= 4 else S_T3} offen offset:{(j&3)*1024} sc1')
def gather_issue(a):
    a(f'v_lshrrev_b32 v{ET+3}, 5, v{V_LANE}')
    a(f'v_lshl_add_u32 v{ET+2}, v{ET+3}, 9, v{V_I4}')
    a(f's_add_u32 s{S_T2}, s{S_T3}, 4096')
    a(f's_add_u32 s{S_T0}, s{S_MT}, 1')
    a(f'v_sub_u32 v{ET+3}, s{S_T0}, v{ET+3}')
    a(f'v_lshrrev_b32 v{ET+3}, 1, v{ET+3}')
    gather_loads(a)
def carry_check(a):
    prs = (S_CM, S_CM2, 106)
    def nm(j): return 'vcc' if prs[j % 3] == 106 else sp(prs[j % 3])
    a(f'v_mov_b32 v{ET}, 0')
    for j in range(10):
        if j < 8: a(f'v_cmp_eq_u64_e64 {nm(j)}, {vp(GA+4*j+2)}, {sp(S_TAG)}')
        if j >= 2: a(f'v_addc_co_u32_e64 v{ET}, {nm(j-2)}, 0, v{ET}, {nm(j-2)}')
    a(f'v_cmp_ne_u32_e64 {sp(S_CM)}, v{ET}, v{ET+3}')
def seg_car(a):
    carry_check(a)
    a('@nf')
    a(f's_cmp_lg_u64 {sp(S_CM)}, 0')
    a('s_cbranch_scc1 L_slow_car')
    a('L_ok_car:')
    a('@f')
    ts(a, 16)
    for j in range(6, -1, -1):
        cfma(a, GA+4*j, P_A256, GA+4*j+4, GA+4*j)
    a(f'v_mov_b32 v{GA+2}, v{GA}\nv_mov_b32 v{GA+3}, v{GA+1}')
    a(f'v_permlane32_swap_b32 v{GA}, v{GA+2}')
    a(f'v_permlane32_swap_b32 v{GA+1}, v{GA+3}')
    cfma(a, GA, P_A128, GA+2, GA)
    cfma(a, LC, P_PW, GA, LC)
def slow_car(a):
    a('L_slow_car:')
    a(f's_mov_b32 s{S_CNT}, 0')
    a('L_slow_car2:')
    gather_loads(a)
    a(f's_add_u32 s{S_CNT}, s{S_CNT}, 1')
    a('s_waitcnt vmcnt(0)')
    carry_check(a)
    a(f's_cmp_ge_u32 s{S_CNT}, 20000')
    a('s_cbranch_scc1 L_ok_car')
    a('s_nop 1')
    a(f's_cmp_lg_u64 {sp(S_CM)}, 0')
    a('s_cbranch_scc1 L_slow_car2')
    a('s_branch L_ok_car')

def seg_p2(a):
    L = V_LANE
    prev = LC
    for r in range(16):
        u = U + 2*r
        cfma(a, u, P_A, prev, u)
        prev = u
        if r & 1:
            a(f'v_cvt_pk_bf16_f32 v{DRE+r//2}, v{u-2}, v{u}')
            a(f'v_cvt_pk_bf16_f32 v{DRE+8+r//2}, v{u-1}, v{u+1}')
def tr_addr(a):
    L = V_LANE
    w_, r_, t = GT, GT+1, GT+2
    a(f's_add_u32 s{S_T0}, s{S_MX}, {3*4096}')
    a(f'v_lshrrev_b32 v{t}, 5, v{L}')
    a(f'v_lshl_add_u32 v{w_}, v{t}, 5, s{S_T0}')
    a(f'v_lshl_add_u32 v{w_}, v{V_TAU}, 6, v{w_}')
    a(f'v_bfe_u32 v{r_}, v{L}, 2, 2')
    a(f'v_lshl_add_u32 v{r_}, v{t}, 3, v{r_}')
    a(f'v_lshl_add_u32 v{r_}, v{r_}, 6, s{S_T0}')
    a(f'v_and_b32 v{t}, 1, v{L}')
    a(f'v_lshl_add_u32 v{r_}, v{t}, 5, v{r_}')
    a(f'v_bfe_u32 v{t}, v{L}, 4, 1')
    a(f'v_lshl_add_u32 v{r_}, v{t}, 4, v{r_}')
    a(f'v_bfe_u32 v{t}, v{L}, 1, 1')
    a(f'v_lshl_add_u32 v{r_}, v{t}, 3, v{r_}')
def seg_tr(a):
    w_, r_ = GT, GT+1
    a(f'ds_write_b128 v{w_}, {vr(DRE,4)}')
    a(f'ds_write_b128 v{w_}, {vr(DRE+4,4)} offset:16')
    a(f'ds_write_b128 v{w_}, {vr(DRE+8,4)} offset:2048')
    a(f'ds_write_b128 v{w_}, {vr(DRE+12,4)} offset:2064')
    for part in range(2):
        for k in range(2):
            for u in range(2):
                a(f'ds_read_b64_tr_b16 {vp(DIM+part*8+k*4+u*2)}, v{r_} offset:{part*2048 + k*1024 + u*256}')
    a(f's_add_u32 s{S_T0}, s{S_A2}, {22*1024}')
    a(f's_add_u32 s{S_T1}, s{S_A2}, {30*1024}')
    for part in range(2):
        for k in range(2):
            a(f'buffer_store_dwordx4 {vr(DIM+part*8+k*4,4)}, v{V_L16}, {srd(SRD_WS)}, s{S_T1 if part else S_T0} offen offset:{k*1024} sc1' + (' ;@id=h3' if part and k else ''))

V_TG = 10
def flag(ph):
    return [f'@wait h{ph}', f'buffer_store_dword v{V_TG}, v{V_ONE}, {srd(SRD_WS)}, s{S_FLG} offen offset:{32*ph} sc1']
def poll_issue(ph):
    return [f's_load_dwordx8 s[{S_PB}:{S_PB+7}], {sp(S_POL)}, {32*ph} glc']
def poll_cmp():
    L = [f's_xor_b64 {sp(S_PB+2*j)}, {sp(S_PB+2*j)}, {sp(S_TG2)}' for j in range(4)]
    L += [f's_or_b64 {sp(S_PB)}, {sp(S_PB)}, {sp(S_PB+2)}', f's_or_b64 {sp(S_PB+4)}, {sp(S_PB+4)}, {sp(S_PB+6)}',
          f's_or_b64 {sp(S_PB)}, {sp(S_PB)}, {sp(S_PB+4)}']
    return L
def poll_check(ph):
    L = poll_cmp()
    return [L[:4], L[4:] + [f's_cbranch_scc1 L_slow_p{ph}', f'L_ok_p{ph}:']]
def slow_poll(a, ph):
    a(f'L_slow_p{ph}:')
    a(f's_mov_b32 s{S_CNT}, 0')
    a(f'L_slow_p{ph}b:')
    a(poll_issue(ph)[0])
    a(f's_add_u32 s{S_CNT}, s{S_CNT}, 1')
    a(f's_cmp_ge_u32 s{S_CNT}, 20000')
    a('s_waitcnt lgkmcnt(0)')
    a(f's_cbranch_scc1 L_ok_p{ph}')
    for l in poll_cmp(): a(l)
    a(f's_cbranch_scc1 L_slow_p{ph}b')
    a(f's_branch L_ok_p{ph}')

def a_setup(a):
    a(f's_lshr_b32 s{S_T0}, s{S_W}, 1')
    a(f's_lshl_b32 s{S_T1}, s{S_RT}, 1')
    a(f's_add_u32 s{S_T1}, s{S_T1}, s{S_T0}')
    a(f's_mul_i32 s{S_T0}, s{S_T1}, {RB}')
    a(f'v_add_u32 v{VA}, s{S_T0}, v{V_L16}')
    a(f's_xor_b32 s{S_T1}, s{S_T1}, 1')
    a(f's_mul_i32 s{S_T0}, s{S_T1}, {RB}')
    a(f'v_add_u32 v{VA+1}, s{S_T0}, v{V_L16}')
    a(f'v_mov_b32 v{V_TG}, s{S_TAG}')
    a(f's_mul_i32 s{S_J}, s{S_W}, {QS}')
    a('@nf')
    a(f's_add_u32 s{S_AX}, s{S_J}, {12*1024}')
    a(f's_cmp_eq_u32 s{S_W}, 3')
    a(f's_cselect_b32 s{S_AX}, {OOB}, s{S_AX}')
    a('@f')
def a_load(p):
    slot = ARING + 8 * (p % RING_N)
    pre = [f's_add_u32 s{S_AS}, s{S_J}, {p*1024}'] if p & 3 == 0 else []
    so = S_AX if p in (14, 15) else S_AS
    l = [f'buffer_load_dwordx4 a[{slot+4*rb}:{slot+4*rb+3}], v{VA+rb}, {srd(SRD_WS)}, s{so} offen offset:{(p&3)*1024} sc1' for rb in range(2)]
    return [pre + [l[0]], [l[1]]]

def epilogue(a):
    rv = [[f'ds_read_b128 {vr(RV+4*q,4)}, v{V_IR+1} offset:{q*16}'] for q in range(4)]
    d3 = w2_dma(0, 'R', 3) + w2_dma(0, 'W', 3)
    def RD(*cells):
        g = []
        for reg, s in cells: g += w2_read(0, reg, s)
        return g
    def D2(*cells):
        g = []
        for reg, s in cells: g += after(f'rd0{reg}{s}', w2_dma(1, reg, s))
        return g
    emit(a, cap(ts, 12))
    emit(a, weave(cap(gelu, 0, [corr_mfma(b) for b in CORD[1:]]), d3 + rv))
    emit(a, cap(ts, 13))
    emit(a, weave(cap(a_setup) + cap(seg_u), RD(('R', 4), ('R', 0), ('W', 0), ('R', 1), ('W', 1))))
    emit(a, weave(cap(seg_x), D2(('R', 4), ('R', 0), ('W', 0))))
    emit(a, flag(0))
    emit(a, cap(ts, 14))
    emit(a, weave(cap(gelu, 1), weave_groups(D2(('R', 1), ('W', 1)), RD(('R', 2), ('W', 2), ('R', 3), ('W', 3)))))
    a('@waitds')
    emit(a, cap(gather_issue))
    emit(a, poll_issue(0))
    emit(a, weave(cap(gelu, 2), D2(('R', 2), ('W', 2), ('R', 3), ('W', 3))))
    emit(a, cap(ts, 15))
    for g in poll_check(0): emit(a, g)
    emit(a, cap(ts, 18))
    al = []
    for p in range(8): al += a_load(p)
    n0 = opt('n0', 8)
    for g in al[:n0]: emit(a, g)
    emit(a, flag(1))
    emit(a, weave(cap(tr_addr) + cap(seg_car), al[n0:]))
    emit(a, cap(seg_p2))
    emit(a, flag(2))
    emit(a, cap(seg_tr))
    emit(a, poll_issue(1))
    emit(a, cap(ts, 17))

XV = 208; SV = 224; DB = 11
def final_prep():
    L = V_LANE
    t0, t1, t2, t3 = 13, 14, 15, 16
    GR_ = 20
    g = []
    g.append([f's_lshr_b32 s{S_T0}, s{S_W}, 1', f's_lshl_b32 s{S_T1}, s{S_RT}, 1', f's_add_u32 s{S_T0}, s{S_T0}, s{S_T1}', f's_lshr_b32 s{S_RIB}, s{S_CB}, 15'])
    g.append([f's_lshl_b32 s{S_RIB}, s{S_RIB}, 6', f's_lshl_b32 s{S_XB}, s{S_T0}, 15', f's_add_u32 s{S_XB}, s{S_XB}, s{S_RIB}', f's_lshl_b32 s{S_T0}, s{S_T0}, 9'])
    g.append([f's_add_u32 s{S_T0}, s{S_T0}, {STATS_OFF}', f'buffer_load_dword v{GR_}, v{V_I4}, {srd(SRD_WS)}, s{S_T0} offen sc1'])
    g.append([f'v_lshrrev_b32 v{t0}, 5, v{L}', f'v_lshlrev_b32 v{t1}, 14, v{t0}', f'v_lshl_add_u32 v{t1}, v{V_TAU}, 1, v{t1}', f'v_lshl_add_u32 v{t3}, v{V_TAU}, 1, s{S_RIB}'])
    g.append([f'global_load_ushort v{DB}, v{t3}, {sp(kp("dskip"))}'])
    g.append([f'global_load_ushort v{DB+1}, v{t3}, {sp(kp("b2"))}'])
    for r in range(16):
        pre = [f's_add_u32 s{S_T3}, s{S_XB}, {r*1024}'] if r & 3 == 0 else []
        g.append(pre + [f'buffer_load_ushort v{XV+r}, v{t1}, {srd(SRD_X)}, s{S_T3} offen offset:{(r&3)*1024}'])
    g1 = g
    g = []
    g.append([f'v_and_b32 v{GR_+1}, 0xffff0000, v{GR_}', f'v_lshlrev_b32 v{GR_}, 16, v{GR_}', f'v_rcp_f32 v{GR_+1}, v{GR_+1}'])
    g.append([f's_lshl_b32 s{S_T0}, s{S_W}, 8', f's_add_u32 s{S_T0}, s{S_T0}, {STT}', f'v_lshrrev_b32 v{t2}, 1, v{V_I4}', f'v_add_u32 v{t2}, s{S_T0}, v{t2}'])
    g.append([f'ds_write_b64 v{t2}, {vp(GR_)}', f'v_lshl_add_u32 v{t2}, v{t0}, 7, s{S_T0}'])
    for q in range(8):
        g.append([f'ds_read_b128 {vr(SV+4*q,4)}, v{t2} offset:{q*16}'])
    g2 = g
    g = [[f'v_lshlrev_b32 v{DB}, 16, v{DB}', f'v_lshlrev_b32 v{DB+1}, 16, v{DB+1}']]
    for r in range(16):
        g.append([f'v_lshlrev_b32 v{XV+r}, 16, v{XV+r}', f'v_sub_f32 v{SV+2*r}, v{XV+r}, v{SV+2*r}', f'v_add_f32 v{XV+r}, v{XV+r}, v{DB+1}'])
        g.append([f'v_mul_f32 v{SV+2*r}, v{SV+2*r}, v{SV+2*r+1}', f'v_fma_f32 v{XV+r}, v{SV+2*r}, v{DB}, v{XV+r}'])
    g.append([f'v_add_u32 v{t2}, s{S_MX}, v{V_L16}', f'v_lshlrev_b32 v{t1}, 1, v{t1}', f's_lshl_b32 s{S_XB}, s{S_XB}, 1'])
    g.append([f'v_xor_b32 v{17+j}, {(j+1) << 14}, v{t2}' for j in range(3)])
    return g1, g2, g

def stage2(a):
    fill = [[] for _ in range(38)]
    def spread(groups, p0, p1):
        n = len(groups)
        for i, g in enumerate(groups): fill[p0 + i * (p1 - p0) // n].append(g)
    g1, g2, g3 = opt('g1', 1), opt('g2', 6), opt('g3', 12)
    fill[g1] += poll_check(1) + [poll_issue(2)]
    fill[opt('f3', 2)].append(flag(3))
    fill[g2] += poll_check(2)
    fill[g3 - 5].append(poll_issue(3))
    fill[g3] += poll_check(3)
    nxt = 0
    for p in range(8, 38):
        gate = g1 if p < 16 else g2 if p < 22 else g3
        st = max(p - RING_N + 1, gate, nxt >> 1)
        nxt = max(nxt, 2 * st) + 1
        fill[st] += a_load(p)
    rd = []
    for reg, s, _ in CELLS: rd += w2_read(1, reg, s)
    spread(c_dma(0, 3) + rd, 0, g2)
    cr = []
    for u in range(4): cr += c_read(0, u)
    spread(cr, g2, g3)
    ci = []
    for u in range(4): ci += after(f'crd0{u}', c_dma(1, u))
    f1, f2, f3 = final_prep()
    spread(f1[:6] + ci, g3, g3 + 6)
    spread(f1[6:], g3 + 6, g3 + 10)
    cr = []
    for u in range(4): cr += c_read(1, u)
    spread(f2, 24, 27)
    spread(cr[:8], 27, 30)
    spread(cr[8:], 30, 33)
    spread(f3, 31, 38)
    for p in range(38):
        slot = ARING + 8 * (p % RING_N)
        q = fill[p]
        tot = sum(cost(l) for g in q for l in g)
        acc_c = 0
        k = 0
        for rb in range(2):
            for cb in range(2):
                kk, b = breg(p, cb)
                acc = ACC + 16 * (2 * rb + cb)
                a(f'v_mfma_f32_32x32x16_bf16 {vr(acc,16)}, a[{slot+4*rb}:{slot+4*rb+3}], {rr(kk,b,4)}, ' + ('0' if p == 0 else vr(acc, 16)))
                k += 1
                while q and (k == 4 or acc_c < max(tot * k / 4, min(tot, 16 * k))):
                    g = q.pop(0)
                    for l in g: a(l); acc_c += cost(l)
        if p in (0, 7, 15, 21, 29): emit(a, cap(ts, {0: 19, 7: 20, 15: 21, 21: 22, 29: 23}[p]))

def final(a):
    t1, t2 = 14, 15
    emit(a, cap(ts, 24))
    for j in range(1, 4):
        for q in range(4):
            a(f'ds_write_b128 v{t2}, {vr(ACC+16*j+4*q,4)} offset:{(j-1)*4096 + q*1024}')
    for r in range(0, 16, 2):
        a(f'v_pk_add_f32 {vp(ACC+r)}, {vp(ACC+r)}, {vp(XV+r)}')
    a('@waitds')
    a('s_barrier')
    for q in range(4):
        for j in range(3):
            a(f'ds_read_b128 {vr(ACC+16+16*j+4*q,4)}, v{17+j} offset:{j*4096 + q*1024}')
    for r in range(0, 16, 2):
        a(f'v_pk_add_f32 {vp(ACC+16+r)}, {vp(ACC+16+r)}, {vp(ACC+32+r)}')
        a(f'v_pk_add_f32 {vp(ACC+r)}, {vp(ACC+r)}, {vp(ACC+48+r)}')
        a(f's_add_u32 s{S_T3}, s{S_XB}, {r*2048}')
        a(f'v_pk_add_f32 {vp(ACC+r)}, {vp(ACC+r)}, {vp(ACC+16+r)}')
        a(f'buffer_store_dword v{ACC+r}, v{t1}, {srd(SRD_OUT)}, s{S_T3} offen')
        a(f'buffer_store_dword v{ACC+r+1}, v{t1}, {srd(SRD_OUT)}, s{S_T3} offen offset:2048')
    a(f's_lshl_b32 s{S_T0}, s{S_CT}, 8')
    a(f's_lshl_b32 s{S_T1}, s{S_W}, 5')
    a(f's_add_u32 s{S_T0}, s{S_T0}, s{S_T1}')
    a(f's_add_u32 s{S_T0}, s{S_T0}, s{S_RT}')
    a(f'v_mov_b32 v{V_TG+1}, s{S_TAG+1}')
    a(f's_cmp_eq_u32 s{S_T0}, 31')
    a(f's_cselect_b32 s{S_T0}, {EPOCH_OFF}, {OOB}' if False else f's_mov_b32 s{S_T1}, {OOB}')
    a(f's_cselect_b32 s{S_T0}, {EPOCH_OFF}, s{S_T1}')
    a(f'buffer_store_dwordx2 {vp(V_TG)}, v{V_ONE}, {srd(SRD_WS)}, s{S_T0} offen sc1')

def gen(name):
    a = Asm()
    a('s_cmp_ge_u32 s2, 256')
    a(f's_cbranch_scc1 L_end')
    if TSON:
        a(f'v_mov_b32 v{V_TS}, 0'); emit(a, cap(ts, 0))
    a(f's_load_dwordx16 s[{KA}:{KA+15}], s[0:1], 0')
    a(f's_load_dwordx16 s[{KA+16}:{KA+31}], s[0:1], 64')
    a(f's_load_dwordx2 s[{KA+32}:{KA+33}], s[0:1], 128')
    a(f's_getpc_b64 s[6:7]')
    a(f'v_lshlrev_b32 v2, 7, v0')
    a(f'v_min_u32 v3, L_end-{name}-64, v2')
    a(f'global_load_dword v{V_JUNK}, v3, s[6:7] ;@junk')
    ids(a)
    lane_setup(a)
    pf = opt('pf', 1)
    if pf: pf1_setup(a)
    a(f's_lshl_b32 s{S_T2}, s{S_MT}, 4')
    a(f's_add_u32 s{S_T2}, s{S_T2}, s{S_G}')
    a(f's_lshl_b32 s{S_T2}, s{S_T2}, 2')
    a(f's_add_u32 s{S_T2}, s{S_T2}, s{S_W}')
    a(f's_lshl_b32 s{S_T2}, s{S_T2}, 11')
    a(f's_mov_b32 s{S_T1}, {EPOCH_OFF}')
    a('s_waitcnt lgkmcnt(0)')
    emit(a, cap(ts, 25))
    first_loads(a)
    pre = opt('pre', 2)
    for g in dma_chunk(0): emit(a, g)
    param_loads(a)
    for g in dma_chunk(1): emit(a, g)
    if pf == 1: pf1(a, pre, 8)
    if pf == 2: pf1(a, pre, 5)
    for c in range(2, pre):
        for g in dma_chunk(c): emit(a, g)
    if pf == 2: pf1(a, 5, 8)
    if pf == 3: pf1(a, pre, 8)
    emit(a, cap(ts, 1))
    addr_setup(a)
    emit(a, cap(ts, 26))
    row_stats(a)
    emit(a, cap(ts, 27))
    params(a)
    emit(a, cap(ts, 2))
    a('@wait dma0')
    a('@waitds')
    a('s_barrier')
    emit(a, cap(ts, 3))
    stage1_loop(a, pre)
    epilogue(a)
    stage2(a)
    final(a)
    emit(a, cap(ts_store))
    a('s_endpgm')
    a('@raw')
    slow_stats(a); slow_car(a)
    for ph in range(4): slow_poll(a, ph)
    a('@endraw')
    a('L_end:')
    a('s_endpgm')
    return post.process(a.lines)

if __name__ == '__main__':
    if len(sys.argv) > 1 and sys.argv[1] == 'ts': TSON = True
    name = KNAME + '_kernel'
    body = gen(name)
    s = header([(name, (256,1,1), (256,1,1), LDS_TOTAL)]) + kernel_begin(name) + '\n'.join(body) + '\n' + rodata_begin() + descriptor(name, 512, 102, 256)
    open(os.environ.get('OUT', 'f.s'), 'w').write(s)
```

```python
import sys, math, struct, os
from ag import *
import post
OPT = dict(x.split('=') for x in os.environ.get('OPT', '').split(',') if x)
def opt(k, d): return type(d)(OPT.get(k, d))
def f32(x): return '0x%08x' % struct.unpack('<I', struct.pack('<f', x))[0]

RB = 152 * 1024
QS = 38 * 1024
STATS_OFF = 0xA00000
CARRY_OFF = 0xA10000
EPOCH_OFF = 0xA80000
FLAG_OFF = 0xB00000
PFLG_OFF = 0xB10000
PART_OFF = 0x1000000
TS_OFF = 0xC00000
OOB = 0x7ff00000
X_BASE = 0; RI_BASE = 65536; W_BASE = 106496; MISC = 155648
CSX = MISC
STT = MISC + 2560
SEGZ = MISC + 3584
SEG = MISC + 5632
LDS_TOTAL = 163840
assert SEG + 2048 <= LDS_TOTAL

S_MT, S_G, S_W = 3, 4, 5
SRD_X, SRD_RI, SRD_W1, SRD_WS, SRD_CRE, SRD_CIM, SRD_W2, SRD_OUT = 8, 12, 16, 20, 24, 28, 32, 36
S_XB, S_RIB, S_WB, S_Q = 40, 41, 42, 43
S_MX, S_MRI, S_MW = 44, 45, 46
S_T0, S_T1, S_T2, S_T3 = 47, 48, 49, 50
S_I = 51
S_TAG = 52
S_LOC = 54
S_PB = 56
S_W2R = 60
KA = 64
def kp(name): return KA + KARG[name] // 4
S_A2, S_BLK0 = 64, 65
S_F0, S_W2A, S_CB, S_FLG, S_AS, S_AB = 70, 71, 72, 74, 76, 77
S_F1 = 75
S_CNT, S_WV = 82, 83
S_PF1 = 94
S_XCC = 79
S_STA = 66
S_W2T = 95
S_FLI = 67
S_PD = 68
S_PF = 69
SRD_CAR = 84
S_CM = 88
S_CM2 = 92
def srd(r): return f's[{r}:{r+3}]'
def sp(r): return f's[{r}:{r+1}]'
def vr(a, n): return f'v[{a}:{a+n-1}]'
def vp(a): return f'v[{a}:{a+1}]'
def rr(k, b, n): return f'{k}[{b}:{b+n-1}]'

V_LANE = 1
VX = 4; VW = 8; AX = 11; AR = 15; AW = 19
V_PFW, V_PFC = 23, 24
V_L16 = 25; V_I4 = 26; V_ONE = 27
SEL = 28
P_A, P_K, P_A16, P_A128, P_A256, P_PW = 32, 34, 36, 38, 40, 42
V_TAU = 44; V_SIG = 45; V_TS = 46; V_JUNK = 47
F = (48, 72)
TMP = 96
CS = 116
V2 = 136
V_CSA = 139
AC = 140
DRE = 144; DIM = 160; DM = (176, 192, 208)
FQ = 224
TQ = 244; V_K = 248; V_IR = 250
AT = 252
VA = 15

def cap(fn, *args, **kw):
    b = Asm(); fn(b, *args, **kw); return b.lines

def weave(main, groups, lo=0.0, hi=1.0):
    pos = []; ok = True; out = []
    for l in main:
        t = l.strip()
        if t == '@nf': ok = False; continue
        if t == '@f': ok = True; pos.append(len(out)); continue
        out.append(l)
        if ok: pos.append(len(out))
    n = len(pos); g = len(groups)
    ins = {}
    for i, grp in enumerate(groups):
        k = int((lo + (hi - lo) * (i + 0.5) / g) * n)
        ins.setdefault(pos[min(k, n - 1)], []).extend(grp)
    res = []
    for i, l in enumerate(out):
        res.extend(ins.get(i, []))
        res.append(l)
    res.extend(ins.get(len(out), []))
    return res

def emit(a, lines):
    for l in lines:
        if l.strip() in ('@nf', '@f'): continue
        a(l)

def mk_srd(a, r, name):
    p = kp(name)
    a(f's_mov_b32 s{r}, s{p}\ns_mov_b32 s{r+1}, s{p+1}\ns_mov_b32 s{r+2}, {SIZES[name]}\ns_mov_b32 s{r+3}, 0x20000')

TSON = False
TSPREV = [None]
def ts(a, idx):
    if not TSON: return
    a('@nf')
    a(f'@ts {idx}')
    a('@f')
def ts_expand(lines):
    out = []; prev = None
    for l in lines:
        t = l.strip()
        if t.startswith('@tsreset '):
            prev = int(t.split()[1])
        elif t.startswith('@ts '):
            idx = int(t.split()[1])
            out.append('@raw')
            if idx in (31, 63): out.append('s_waitcnt lgkmcnt(0)')
            if prev is not None:
                out.append(f'v_writelane_b32 v{V_TS}, s98, {prev}')
                out.append(f'v_writelane_b32 v{V_TS}, s100, {prev+32}')
            if idx != 63:
                out.append('s_memrealtime s[98:99]')
                out.append('s_memtime s[100:101]')
            out.append('@endraw')
            prev = idx
        else: out.append(l)
    return out
def ts_store(a):
    if not TSON: return
    a('s_waitcnt vmcnt(0)')
    ts(a, 31)
    ts(a, 63)
    a(f's_lshl_b32 s98, s2, 2')
    a(f's_add_u32 s98, s98, s{S_W}')
    a(f's_lshl_b32 s98, s98, 8')
    a(f's_add_u32 s98, s98, {TS_OFF}')
    a(f'v_lshlrev_b32 v2, 2, v{V_LANE}')
    a(f'buffer_store_dword v{V_TS}, v2, {srd(SRD_WS)}, s98 offen')
    a(f's_add_u32 s98, s98, 0x40000')
    a(f'buffer_store_dword v3, v2, {srd(SRD_WS)}, s98 offen')
def slow_note(a, idx):
    if TSON: a(f'v_writelane_b32 v3, s{S_CNT}, {idx}')

def bf16r(a, d, s):
    a(f'v_cvt_pk_bf16_f32 v{d}, v{s}, v{s}')
    a(f'v_lshlrev_b32 v{d}, 16, v{d}')

def cexp(a, d, zl, zrev, sc, t0, t1):
    a(f'v_mul_f32 v{t0}, {sc}, v{zl}')
    a(f'v_mul_f32 v{t1}, {sc}, v{zrev}')
    a(f'v_exp_f32 v{t0}, v{t0}')
    a(f'v_fract_f32 v{t1}, v{t1}')
    a(f'v_cos_f32 v{d}, v{t1}')
    a(f'v_sin_f32 v{d+1}, v{t1}')
    a(f'v_mul_f32 v{d}, v{d}, v{t0}')
    a(f'v_mul_f32 v{d+1}, -v{d+1}, v{t0}')

def cfma(a, d, m, x, c):
    a(f'v_pk_fma_f32 {vp(d)}, {vp(x)}, {vp(m)}, {vp(c)} op_sel_hi:[1,0,1]')
    a(f'v_pk_fma_f32 {vp(d)}, {vp(x)}, {vp(m)}, {vp(d)} op_sel:[1,1,0] op_sel_hi:[0,1,1] neg_lo:[0,1,0]')

S_KB = 6
def rot_step(kc):
    L = []
    if kc > 0: L += [f's_add_u32 s{S_KB}, s{S_KB}, 128', f's_and_b32 s{S_KB}, s{S_KB}, 0x380']
    return L + [f's_mul_i32 s{S_KB+1}, s{S_KB}, 1376']
def dma_chunk(kc, order='xrw'):
    slot = kc & 3
    P = {}
    P['x'] = [([f's_add_u32 m0, s{S_MX}, {slot*4096}', f's_add_u32 s{S_F0}, s{S_XB}, s{S_KB}'] if q == 0 else []) +
              [f'buffer_load_dwordx4 v{VX+q}, {srd(SRD_X)}, s{S_F0} offen offset:{q*1024} lds'] for q in range(4)]
    P['r'] = [([f's_add_u32 m0, s{S_MRI}, {slot*8192}', f's_add_u32 s{S_F0}, s{S_RIB}, s{S_KB}'] if q == 0 else []) +
              [f'buffer_load_dwordx4 v{VX+q}, {srd(SRD_RI)}, s{S_F0} offen offset:{q*1024} lds'] for q in range(2)]
    P['w'] = [([f's_add_u32 m0, s{S_MW}, {slot*12288}', f's_add_u32 s{S_F0}, s{S_WB}, s{S_KB+1}'] if u == 0 else []) +
              [f'buffer_load_dwordx4 v{VW+u}, {srd(SRD_W1)}, s{S_F0} offen offset:{u*1024} lds'] for u in range(3)]
    g = [rot_step(kc)]
    for o in order: g += P[o]
    g[-1][-1] += f' ;@id=dma{kc}'
    return g

def w2_dma(reg, s):
    g = []
    def ld(e, last): return f'buffer_load_dwordx4 v{V2+e}, {srd(SRD_W2)}, s{S_F0} offen offset:{e*1024} lds' + (f' ;@id=w{reg}{s}' if last else '')
    if reg == 'W':
        g.append([f's_add_u32 m0, s{S_MW}, {s*12288}', f's_mov_b32 s{S_F0}, s{S_W2R+s}', ld(0, 0)])
        g += [[ld(1, 0)], [ld(2, 1)]]
    elif s < 4:
        g.append([f's_add_u32 m0, s{S_MRI}, {s*8192}', f's_add_u32 s{S_F0}, s{S_W2R+s}, {3*16384}', ld(0, 0)])
        g.append([f's_xor_b32 s{S_F1}, s{S_MT}, {s}', f's_and_b32 s{S_F0}, s{S_F1}, 2', f's_and_b32 s{S_F1}, s{S_F1}, 3',
                  f's_lshl1_add_u32 s{S_F0}, s{S_F0}, s{S_F1}'])
        g.append([f's_lshl_b32 s{S_F0}, s{S_F0}, 14', f's_add_u32 s{S_F0}, s{S_F0}, s{S_W2T}', ld(1, 1)])
    else:
        g.append([f's_add_u32 m0, s{S_MRI}, {s*8192}', f's_add_u32 s{S_F0}, s{S_W2A}, {(96*2+64)*1024}', ld(0, 0)])
        g.append([ld(1, 1)])
    return g
def c_dma(u):
    part, kh = u >> 1, u & 1
    g = []
    for q in range(4):
        pre = [f's_add_u32 m0, s{S_MX}, {u*4096}'] if q == 0 else []
        g.append(pre + [f'buffer_load_dwordx4 v{VX+q}, {srd(SRD_CIM if part else SRD_CRE)}, s{S_CB+kh} offen offset:{q*1024} lds' + (f' ;@id=c{u}' if q == 3 else '')])
    return g
def b2_dma(s): return w2_dma('W', s) + w2_dma('R', s) + c_dma(s)
AWL = 200; ARL = 184; ACL = 208
def b_addr(which):
    g = []
    for lam in range(4):
        st, dst, src, n = {'W': (12288, AWL, AT+2, 2), 'R': (8192, ARL, AT, 2), 'C': (4096, ACL, AC, 4)}[which]
        g.append([f's_xor_b32 s{S_F1}, s{S_MT}, {lam}', f's_and_b32 s{S_F1}, s{S_F1}, 3', f's_mul_i32 s{S_F1}, s{S_F1}, {st}'] +
                 [f'v_add_u32 v{dst+n*lam+c}, s{S_F1}, v{src+c}' for c in range(n)])
    return g
def b_read(k, jb, dst):
    ty, r, x = k
    if ty in ('re', 'im'):
        lam = (2 if ty == 'im' else 0) + (r >> 1)
        return [f'ds_read_b128 {vr(dst,4)}, v{ACL + 4*lam + 2*(r&1) + x} offset:{jb*16384}']
    if ty == 'm' and x < 3: ad, st, off = AWL + 2*r, 3072, x*1024
    elif ty == 'm': ad, st, off = ARL + 2*r, 2048, 0
    elif r < 2: ad, st, off = ARL + 2*(2*r + x), 2048, 1024
    else: ad, st, off = AT, 2048, 4*8192 + x*1024
    return [f'ds_read_b64_tr_b16 {vp(dst+2*u)}, v{ad + (jb & 1)} offset:{(u + 2*(jb >> 1))*st + off}' for u in range(2)]
def after(wait, groups):
    return [[f'@wait {wait}'] + groups[0]] + groups[1:]

def ids(a):
    a(f'v_lshrrev_b32 v2, 6, v0')
    a(f'v_and_b32 v{V_LANE}, 63, v0')
    a(f'v_readfirstlane_b32 s{S_W}, v2')
    a(f's_and_b32 s{S_T0}, s2, 7')
    a(f's_lshr_b32 s{S_T1}, s2, 3')
    a(f's_and_b32 s{S_MT}, s{S_T0}, 3')
    a(f's_lshl_b32 s{S_MT}, s{S_MT}, 2')
    a(f's_and_b32 s{S_T2}, s{S_T1}, 3')
    a(f's_add_u32 s{S_MT}, s{S_MT}, s{S_T2}')
    a(f's_lshr_b32 s{S_G}, s{S_T0}, 2')
    a(f's_lshl_b32 s{S_G}, s{S_G}, 3')
    a(f's_lshr_b32 s{S_T2}, s{S_T1}, 2')
    a(f's_add_u32 s{S_G}, s{S_G}, s{S_T2}')
    a(f's_lshr_b32 s{S_Q}, s{S_G}, 2')
    a(f's_and_b32 s{S_I}, s{S_G}, 3')
    a(f's_lshl_b32 s{S_XB}, s{S_MT}, 17')
    a(f's_lshl_b32 s{S_T0}, s{S_W}, 15')
    a(f's_add_u32 s{S_XB}, s{S_XB}, s{S_T0}')
    a(f's_lshl_b32 s{S_RIB}, s{S_G}, 15')
    a(f's_and_b32 s{S_T0}, s{S_W}, 1')
    a(f's_lshl_b32 s{S_T0}, s{S_T0}, 13')
    a(f's_add_u32 s{S_RIB}, s{S_RIB}, s{S_T0}')
    a(f's_mul_i32 s{S_T0}, s{S_G}, 3')
    a(f's_sub_u32 s{S_PB}, s{S_T0}, s{S_Q}')
    a(f's_mul_i32 s{S_WB}, s{S_W}, {16*2752}')
    a(f's_lshl_b32 s{S_T0}, s{S_PB}, 6')
    a(f's_add_u32 s{S_WB}, s{S_WB}, s{S_T0}')
    a(f's_lshl_b32 s{S_MX}, s{S_W}, 14')
    a(f's_lshl_b32 s{S_MRI}, s{S_W}, 11')
    a(f's_add_u32 s{S_MRI}, s{S_MRI}, {RI_BASE}')
    a(f's_mul_i32 s{S_MW}, s{S_W}, 3072')
    a(f's_add_u32 s{S_MW}, s{S_MW}, {W_BASE}')

def lane_setup(a):
    L = V_LANE
    t0, t1, t2, t3 = TMP, TMP+1, TMP+2, TMP+3
    a(f'v_lshrrev_b32 v{t3}, 5, v{L}')
    a(f'v_lshlrev_b32 v{t0}, 14, v{t3}')
    a(f'v_bfe_u32 v{t1}, v{L}, 3, 2')
    a(f'v_lshl_add_u32 v{t0}, v{t1}, 10, v{t0}')
    a(f'v_and_b32 v{t1}, 7, v{L}')
    a(f'v_lshrrev_b32 v{t2}, 4, v{L}')
    a(f'v_xor_b32 v{t1}, v{t1}, v{t2}')
    a(f'v_lshl_add_u32 v{VX}, v{t1}, 4, v{t0}')
    a(f'v_xor_b32 v{t1}, 4, v{t1}')
    a(f'v_lshl_add_u32 v{VX+1}, v{t1}, 4, v{t0}')
    a(f'v_add_u32 v{VX+1}, 3072, v{VX+1}')
    a(f'v_add_u32 v{VX+2}, {2*3072}, v{VX}')
    a(f'v_add_u32 v{VX+3}, {2*3072}, v{VX+1}')
    a(f'v_and_b32 v{t0}, 31, v{L}')
    a(f'v_lshlrev_b32 v{V_I4}, 4, v{t0}')
    a(f'v_lshl_add_u32 v{TMP+16}, v{t3}, 10, v{V_I4}')
    for u in range(3):
        a(f'v_add_u32 v{t0}, {u*64}, v{L}')
        a(f'v_mul_u32_u24 v{t1}, 171, v{t0}')
        a(f'v_lshrrev_b32 v{t1}, 11, v{t1}')
        a(f'v_mul_u32_u24 v{t2}, {2752-192}, v{t1}')
        a(f'v_lshl_add_u32 v{VW+u}, v{L}, 4, v{t2}')
    a(f'v_lshlrev_b32 v{V_L16}, 4, v{L}')
    a(f'v_bfe_u32 v{t0}, v{L}, 2, 1')
    a(f'v_bfe_u32 v{t1}, v{L}, 3, 2')
    a(f'v_and_b32 v{t2}, 3, v{L}')
    a(f'v_lshl_add_u32 v{t2}, v{t1}, 2, v{t2}')
    a(f'v_lshl_add_u32 v{V_TAU}, v{t0}, 4, v{t2}')
    a(f's_lshl_b32 s{S_T0}, s{S_G}, 6')
    a(f'v_lshl_add_u32 v{TMP+17}, v{V_TAU}, 1, s{S_T0}')
    a(f's_lshl_b32 s{S_T0}, s{S_PB}, 6')
    a(f'v_lshrrev_b32 v{t0}, 3, v{V_I4}')
    a(f'v_add_u32 v{t0}, s{S_T0}, v{t0}')
    for b in range(3):
        a(f'v_add_u32 v{FQ+10+4*b}, {64*b}, v{t0}')
        a(f'v_min_u32 v{FQ+10+4*b}, {2*1375}, v{FQ+10+4*b}')

XR = TMP+8
PL = TQ
def first_loads(a):
    a(f's_load_dwordx2 {sp(S_TAG)}, {sp(kp("ws"))}, s{S_T1}')
    mk_srd(a, SRD_X, 'x')
    a(f's_mov_b32 s{S_BLK0}, s{S_PB}')
    a(f's_mov_b32 s{S_PB+1}, s{S_T2}')
    mk_srd(a, SRD_W1, 'w1')
    a(f's_cmp_lt_u32 s{S_W}, 2')
    a(f's_cselect_b32 s{SRD_RI}, s{kp("bre")}, s{kp("bim")}')
    a(f's_cselect_b32 s{SRD_RI+1}, s{kp("bre")+1}, s{kp("bim")+1}')
    a(f's_mov_b32 s{SRD_RI+2}, {SIZES["bre"]}\ns_mov_b32 s{SRD_RI+3}, 0x20000')

def stat_loads(a):
    a(f'buffer_load_dwordx4 {vr(XR,4)}, v{TMP+16}, {srd(SRD_X)}, s{S_PB+1} offen')
    a(f'buffer_load_dwordx4 {vr(XR+4,4)}, v{TMP+16}, {srd(SRD_X)}, s{S_PB+1} offen offset:512')
def param_loads(a):
    for n, nm in enumerate(('lre', 'lim', 'logdt')):
        a(f'global_load_ushort v{PL+n}, v{TMP+17}, {sp(kp(nm))}')
    for b in range(3):
        a(f'global_load_ushort v{FQ+10+4*b}, v{FQ+10+4*b}, {sp(kp("b1"))}')

def addr_setup(a):
    L = V_LANE
    t0, t1, t2, t3 = TMP, TMP+1, TMP+2, TMP+3
    mk_srd(a, SRD_WS, 'ws'); mk_srd(a, SRD_W2, 'w2'); mk_srd(a, SRD_OUT, 'out')
    a(f's_bitcmp1_b32 s{S_MT}, 1')
    for j in range(2):
        a(f's_cselect_b32 s{SRD_CRE+j}, s{kp("cim")+j}, s{kp("cre")+j}')
        a(f's_cselect_b32 s{SRD_CIM+j}, s{kp("cre")+j}, s{kp("cim")+j}')
    for r_ in (SRD_CRE, SRD_CIM):
        a(f's_mov_b32 s{r_+2}, {SIZES["cre"]}\ns_mov_b32 s{r_+3}, 0x20000')
    a(f'v_lshlrev_b32 v{t0}, 3, v{V_I4}')
    a(f'v_bfe_u32 v{t1}, v{L}, 1, 3')
    a(f'v_lshrrev_b32 v{t3}, 5, v{L}')
    a(f'v_xor_b32 v{t1}, v{t1}, v{t3}')
    for s in range(4):
        a(f's_add_u32 s{S_T0}, s{S_W}, {s}')
        a(f's_and_b32 s{S_T0}, s{S_T0}, 3')
        a(f's_lshl_b32 s{S_T1}, s{S_T0}, 1')
        a(f'v_xor_b32 v{t2}, s{S_T1}, v{t1}')
        a(f'v_lshl_add_u32 v{t2}, v{t2}, 4, v{t0}')
        a(f'v_add_u32 v{AX+s}, s{S_MX}, v{t2}')
        a(f'v_add_u32 v{AR+s}, {RI_BASE}, v{t2}')
        a(f's_mul_i32 s{S_T1}, s{S_T0}, {16*192}')
        a(f's_add_u32 s{S_T1}, s{S_T1}, {W_BASE}')
        a(f'v_mov_b32 v{AW+s}, s{S_T1}')
    for s in range(4):
        a(f'v_xor_b32 v{t2}, {2*s}, v{t1}')
        a(f'v_lshl_add_u32 v{AC+s}, v{t2}, 4, v{t0}')
    a(f'v_bfe_u32 v{t1}, v{L}, 2, 2')
    a(f'v_lshl_add_u32 v{t0}, v{t3}, 3, v{t1}')
    a(f'v_mul_u32_u24 v{t0}, 192, v{t0}')
    a(f'v_bfe_u32 v{t1}, v{L}, 4, 1')
    a(f'v_lshl_add_u32 v{t0}, v{t1}, 5, v{t0}')
    a(f'v_and_b32 v{t1}, 3, v{L}')
    a(f'v_lshl_add_u32 v{t0}, v{t1}, 3, v{t0}')
    for s in range(4):
        a(f'v_add_u32 v{AW+s}, v{AW+s}, v{t0}')
    a(f'v_lshrrev_b32 v{t0}, 2, v{L}')
    a(f'v_lshrrev_b32 v{t2}, 4, v{L}')
    a(f'v_xor_b32 v{t0}, v{t0}, v{t2}')
    a(f'v_and_b32 v{t0}, 1, v{t0}')
    a(f'v_cmp_eq_u32 vcc, 0, v{t0}')
    a(f'v_mov_b32 v{t1}, 0x3f803f80')
    a(f's_lshl_b32 s{S_T0}, s{S_W}, 1')
    a(f'v_add_u32 v{V_SIG}, s{S_T0}, v{t3}')
    for j in range(4):
        a(f'v_cndmask_b32 v{SEL+j}, 0, v{t1}, vcc')
    a(f'v_cmp_eq_u32 vcc, 0, v{L}')
    a(f'v_mov_b32 v{t1}, {OOB}')
    a(f'v_lshrrev_b32 v{t0}, 3, v{L}')
    a(f'v_cndmask_b32 v{V_ONE}, v{t1}, v{L}, vcc')
    a(f'v_lshlrev_b32 v{t0}, 10, v{t0}')
    a(f'v_bfe_u32 v{t1}, v{L}, 4, 1')
    a(f'v_lshlrev_b32 v{t1}, 2, v{t1}')
    a(f'v_and_b32 v{t2}, 7, v{L}')
    a(f'v_xor_b32 v{t1}, v{t1}, v{t2}')
    a(f'v_lshl_add_u32 v{V2}, v{t1}, 4, v{t0}')
    for e in range(1, 3):
        a(f'v_add_u32 v{V2+e}, {e*15360}, v{V2}')
    a(f'v_bfe_u32 v{t1}, v{L}, 2, 2')
    a(f'v_lshl_add_u32 v{t0}, v{t3}, 2, v{t1}')
    a(f'v_lshlrev_b32 v{t0}, 7, v{t0}')
    a(f'v_and_b32 v{t1}, 1, v{L}')
    a(f'v_lshl_add_u32 v{t0}, v{t1}, 5, v{t0}')
    a(f'v_bfe_u32 v{t1}, v{L}, 4, 1')
    a(f'v_lshl_add_u32 v{t0}, v{t1}, 4, v{t0}')
    a(f'v_bfe_u32 v{t1}, v{L}, 1, 1')
    a(f'v_lshl_add_u32 v{t0}, v{t1}, 3, v{t0}')
    a(f'v_bfe_u32 v{t1}, v{L}, 3, 1')
    a(f's_and_b32 s{S_T0}, s{S_Q}, 1')
    a(f'v_xor_b32 v{t1}, s{S_T0}, v{t1}')
    a(f'v_lshl_add_u32 v{t2}, v{t1}, 6, v{t0}')
    a(f'v_add_u32 v{AT}, {RI_BASE}, v{t2}')
    a(f'v_add_u32 v{AT+2}, {W_BASE}, v{t2}')
    a(f'v_xor_b32 v{t2}, 64, v{t2}')
    a(f'v_add_u32 v{AT+1}, {RI_BASE}, v{t2}')
    a(f'v_add_u32 v{AT+3}, {W_BASE}, v{t2}')
    a(f's_xor_b32 s{S_T0}, s{S_W}, s{S_Q}')
    a(f's_lshl_b32 s{S_T1}, s{S_I}, 2')
    a(f's_add_u32 s{S_T1}, s{S_T1}, s{S_T0}')
    a(f's_lshl_b32 s{S_T1}, s{S_T1}, 15')
    a(f's_lshr_b32 s{S_T2}, s{S_G}, 1')
    a(f's_and_b32 s{S_T3}, s{S_MT}, 1')
    a(f's_xor_b32 s{S_T2}, s{S_T2}, s{S_T3}')
    a(f's_lshl_b32 s{S_T2}, s{S_T2}, 7')
    a(f's_add_u32 s{S_CB}, s{S_T1}, s{S_T2}')
    a(f's_xor_b32 s{S_CB+1}, s{S_CB}, 128')
    a(f's_lshr_b32 s{S_T0}, s{S_T0}, 1')
    a(f's_lshl_b32 s{S_T0}, s{S_T0}, 7')
    a(f's_lshl_b32 s{S_T1}, s{S_I}, 8')
    a(f's_add_u32 s{S_T0}, s{S_T0}, s{S_T1}')
    a(f's_mul_i32 s{S_W2A}, s{S_Q}, {352*1024}')
    a(f's_add_u32 s{S_W2A}, s{S_W2A}, s{S_T0}')
    a(f's_and_b32 s{S_T0}, s{S_W}, 1')
    a(f's_lshl_b32 s{S_T0}, s{S_T0}, 13')
    a(f's_add_u32 s{S_W2A}, s{S_W2A}, s{S_T0}')
    a(f's_lshl_b32 s{S_T0}, s{S_MT}, 2')
    a(f's_add_u32 s{S_T0}, s{S_T0}, s{S_W}')
    a(f's_lshl_b32 s{S_T0}, s{S_T0}, 2')
    a(f's_add_u32 s{S_T0}, s{S_T0}, s{S_Q}')
    a(f's_mul_i32 s{S_AB}, s{S_T0}, {QS}')
    a(f's_lshl_b32 s{S_T3}, s{S_I}, 11')
    a(f's_add_u32 s{S_A2}, s{S_AB}, s{S_T3}')
    a(f's_lshl_b32 s{S_FLG}, s{S_T0}, 7')
    a(f's_add_u32 s{S_FLG}, s{S_FLG}, {FLAG_OFF}')
    a(f's_lshl_b32 s{S_WV}, s{S_MT}, 4')
    a(f's_add_u32 s{S_WV}, s{S_WV}, s{S_G}')
    a(f's_lshl_b32 s{S_WV}, s{S_WV}, 2')
    a(f's_add_u32 s{S_WV}, s{S_WV}, s{S_W}')
    a(f's_lshl_b32 s{S_T0}, s{S_W}, 2')
    a(f's_add_u32 s{S_T0}, s{S_T0}, {CSX}')
    a(f'v_add_u32 v{V_CSA}, s{S_T0}, v{V_I4}')
    for r in (0, 1, 2, 4, 5, 6, 11, 15, 19):
        a(f'v_mov_b32 v{FQ+r}, 0')
    a(f'v_lshlrev_b32 v{t0}, 3, v0')
    a(f'v_add_u32 v{t0}, {SEGZ}, v{t0}')
    a(f'ds_write_b64 v{t0}, {vp(FQ)}')
    a(f's_add_u32 s{S_W2T}, s{S_W2A}, {48*1024}')
    a(f's_xor_b32 s{S_T0}, s{S_I}, s{S_MT}')
    a(f's_and_b32 s{S_T0}, s{S_T0}, 3')
    for r in range(4):
        a(f's_xor_b32 s{S_T1}, s{S_T0}, {r}')
        a(f's_mul_i32 s{S_T1}, s{S_T1}, {96*1024}')
        a(f's_add_u32 s{S_W2R+r}, s{S_T1}, s{S_W2A}')

def late_setup(a):
    a(f's_getreg_b32 s{S_XCC}, hwreg(HW_REG_XCC_ID, 0, 4)')
    a(f's_mov_b32 s{SRD_CAR}, s{kp("ws")}\ns_mov_b32 s{SRD_CAR+1}, s{kp("ws")+1}')
    a(f's_lshl_b32 s{S_T0}, s{S_G}, 13')
    a(f's_add_u32 s{SRD_CAR+2}, s{S_T0}, {CARRY_OFF + 8192}')
    a(f's_mov_b32 s{SRD_CAR+3}, 0x20000')
def vx_flip():
    return [[f's_and_b32 s{S_F1}, s{S_I}, 1', f's_lshl_b32 s{S_F1}, s{S_F1}, 6'] + [f'v_xor_b32 v{VX+q}, s{S_F1}, v{VX+q}' for q in range(4)]]
def row_stats(a):
    s, q = TMP, TMP+1
    t = list(range(TMP+2, TMP+8))
    a(f's_mov_b32 s{S_T0}, 0x3f803f80')
    for j in range(8):
        a(f'v_dot2_f32_bf16 v{s}, v{XR+j}, s{S_T0}, ' + ('0' if j == 0 else f'v{s}'))
        a(f'v_dot2_f32_bf16 v{q}, v{XR+j}, v{XR+j}, ' + ('0' if j == 0 else f'v{q}'))
    a(f's_mul_i32 s{S_TAG}, s{S_TAG}, 0x0019660d')
    a(f's_add_u32 s{S_TAG}, s{S_TAG}, 0x3c6ef35f')
    a(f's_mul_i32 s{S_TAG+1}, s{S_TAG+1}, 0x41c64e6d')
    for n in (8, 4, 2, 1):
        a(f'v_add_f32_dpp v{s}, v{s}, v{s} row_ror:{n} row_mask:0xf bank_mask:0xf')
        a(f'v_add_f32_dpp v{q}, v{q}, v{q} row_ror:{n} row_mask:0xf bank_mask:0xf')
        if n == 8: a(f's_add_u32 s{S_TAG+1}, s{S_TAG+1}, 0x00003039')
        if n == 4: a(f's_or_b32 s{S_TAG+1}, s{S_TAG+1}, 0x80000000')
        if n == 2: a(f's_andn2_b32 s{S_TAG+1}, s{S_TAG+1}, 15')
    a(f'v_mov_b32 v{t[0]}, v{s}')
    a(f'v_mov_b32 v{t[1]}, v{q}')
    a(f's_or_b32 s{S_XCC}, s{S_XCC}, s{S_TAG+1}')
    a(f'v_permlane16_swap_b32 v{s}, v{t[0]}')
    a(f'v_permlane16_swap_b32 v{q}, v{t[1]}')
    a(f'v_add_f32 v{s}, v{s}, v{t[0]}')
    a(f'v_add_f32 v{q}, v{q}, v{t[1]}')
    mean, var, mb, d, rinv = s, q, t[0], t[1], t[2]
    G = XR
    a(f'v_mul_f32 v{mean}, {f32(1/512)}, v{s}')
    a(f'v_mul_f32 v{var}, {f32(1/512)}, v{q}')
    a(f'v_fma_f32 v{var}, -v{mean}, v{mean}, v{var}')
    a(f'v_max_f32 v{var}, 0, v{var}')
    bf16r(a, d, var)
    a(f'v_add_f32 v{d}, {f32(1e-5)}, v{d}')
    bf16r(a, d, d)
    a(f'v_sqrt_f32 v{d}, v{d}')
    a(f'v_mov_b32 v{G+2}, s{S_TAG}')
    a(f'v_cvt_pk_bf16_f32 v{G}, v{mean}, v{d}')
    a(f'v_and_b32 v{d}, 0xffff0000, v{G}')
    a(f'v_lshlrev_b32 v{mb}, 16, v{G}')
    a(f'v_rcp_f32 v{rinv}, v{d}')
    a(f'v_sub_f32 v{t[3]}, v{mean}, v{mb}')
    a(f'v_mul_f32 v{t[4]}, v{var}, v{rinv}')
    a(f'v_mul_f32 v{t[3]}, v{t[3]}, v{rinv}')
    a(f'v_mul_f32 v{t[4]}, v{t[4]}, v{rinv}')
    bf16r(a, t[4], t[4])
    a(f'v_add_f32 v{t[4]}, {f32(1e-5)}, v{t[4]}')
    bf16r(a, t[4], t[4])
    a(f'v_sqrt_f32 v{t[4]}, v{t[4]}')
    a(f'v_mov_b32 v{G+3}, s{S_XCC}')
    a(f'v_cvt_pk_bf16_f32 v{G+1}, v{t[3]}, v{t[4]}')
    a(f'v_cmp_eq_u32 vcc, 0, v{V_I4}')
    a(f'v_lshrrev_b32 v{t[5]}, 1, v{V_LANE}')
    a(f's_lshl_b32 s{S_T0}, s{S_WV}, 5')
    a(f's_add_u32 s{S_T0}, s{S_T0}, {STATS_OFF}')
    a(f'v_cndmask_b32 v{t[5]}, v{V_ONE}, v{t[5]}, vcc')
    a(f'buffer_store_dwordx4 {vr(G,4)}, v{t[5]}, {srd(SRD_WS)}, s{S_T0} offen sc1')

def params(a):
    t0, t1, t2, zl, zv = range(TQ+3, TQ+8)
    lre, lim, ldt = PL, PL+1, PL+2
    a(f'v_lshlrev_b32 v{ldt}, 16, v{ldt}')
    a(f'v_mul_f32 v{ldt}, {f32(math.log2(math.e))}, v{ldt}')
    a(f'v_exp_f32 v{ldt}, v{ldt}')
    a(f'v_lshlrev_b32 v{lre}, 16, v{lre}')
    a(f'v_lshlrev_b32 v{lim}, 16, v{lim}')
    bf16r(a, ldt, ldt)
    a(f'v_mul_f32 v{zl}, v{ldt}, v{lre}')
    a(f'v_mul_f32 v{zv}, v{ldt}, v{lim}')
    a(f'v_mul_f32 v{zl}, {f32(math.log2(math.e))}, v{zl}')
    a(f'v_mul_f32 v{zv}, {f32(1/(2*math.pi))}, v{zv}')
    cexp(a, P_A, zl, zv, '1.0', t0, t1)
    cexp(a, P_A16, zl, zv, f32(16.0), t0, t1)
    cexp(a, P_A128, zl, zv, f32(128.0), t0, t1)
    cexp(a, P_A256, zl, zv, f32(256.0), t0, t1)
    a(f'v_lshlrev_b32 v{t2}, 4, v{V_SIG}')
    a(f'v_cvt_f32_u32 v{t2}, v{t2}')
    cexp(a, P_PW, zl, zv, f'v{t2}', t0, t1)
    a(f'v_mul_f32 v{t0}, v{lre}, v{lre}')
    a(f'v_fma_f32 v{t0}, v{lim}, v{lim}, v{t0}')
    a(f'v_rcp_f32 v{t0}, v{t0}')
    a(f'v_add_f32 v{t1}, -1.0, v{P_A}')
    a(f'v_add_f32 v{t0}, v{t0}, v{t0}')
    a(f'v_mul_f32 v{P_K}, v{t1}, v{lre}')
    a(f'v_fma_f32 v{P_K}, -v{P_A+1}, v{lim}, v{P_K}')
    a(f'v_mul_f32 v{P_K+1}, -v{P_A+1}, v{lre}')
    a(f'v_fma_f32 v{P_K+1}, -v{t1}, v{lim}, v{P_K+1}')
    a(f'v_mul_f32 v{P_K}, v{P_K}, v{t0}')
    a(f'v_mul_f32 v{P_K+1}, v{P_K+1}, v{t0}')
    a(f'v_cmp_gt_u32 vcc, 32, v{V_LANE}')
    for b in range(3):
        a(f'v_lshl_or_b32 v{FQ+10+4*b}, v{FQ+10+4*b}, 16, v{FQ+10+4*b}')
    for b in range(3):
        a(f'v_cndmask_b32 v{FQ+10+4*b}, 0, v{FQ+10+4*b}, vcc')

def frag_reads(kc, s):
    slot = kc & 3; f = F[s & 1]
    r = []
    r.append(f'ds_read_b128 {vr(f,4)}, v{AX+s} offset:{slot*4096}')
    r.append(f'ds_read_b128 {vr(f+4,4)}, v{AR+s} offset:{slot*8192}')
    r.append(f'ds_read_b128 {vr(f+8,4)}, v{AR+s} offset:{slot*8192+4096}')
    for b in range(3):
        for u in range(2):
            r.append(f'ds_read_b64_tr_b16 {vr(f+12+4*b+2*u,2)}, v{AW+s} offset:{slot*12288 + 4*u*192 + 64*b}')
    return r

def step_mfmas(kc, s):
    f = F[s & 1]
    first = (kc == 0 and s == 0)
    def c(acc, n, z): return '0' if z else vr(acc, n)
    m = []
    m.append(f'v_mfma_f32_32x32x16_bf16 {vr(DRE,16)}, {vr(f,4)}, {vr(f+4,4)}, {c(DRE,16,first)}')
    m.append(f'v_mfma_f32_32x32x16_bf16 {vr(DIM,16)}, {vr(f,4)}, {vr(f+8,4)}, {c(DIM,16,first)}')
    for b in range(3):
        m.append(f'v_mfma_f32_32x32x16_bf16 {vr(DM[b],16)}, {vr(f+12+4*b,4)}, {vr(f,4)}, {c(DM[b],16,first)}')
    if s == 0:
        for b in range(5):
            m.append(f'v_mfma_f32_16x16x32_bf16 {vr(CS+4*b,4)}, {vr(SEL,4)}, {vr(f+4+4*b,4)}, {c(CS+4*b,4,kc==0)}')
    return m

SG = TMP
def stats_gather_issue():
    return [[f's_lshr_b32 s{S_STA}, s{S_XB}, 6', f's_add_u32 s{S_STA}, s{S_STA}, {STATS_OFF}', f'v_lshlrev_b32 v{TMP+4}, 4, v{V_TAU}'],
            [f'buffer_load_dwordx4 {vr(SG,4)}, v{TMP+4}, {srd(SRD_WS)}, s{S_STA} offen sc1'],
            [f's_andn2_b32 s{S_AS}, s{S_WV}, 31', f's_lshl_b32 s{S_AS}, s{S_AS}, 5', f's_add_u32 s{S_AS}, s{S_AS}, {STATS_OFF}',
             f'v_and_b32 v{TMP+16}, 7, v{V_LANE}', f'v_lshlrev_b32 v{TMP+16}, 7, v{TMP+16}'],
            [f'buffer_load_dwordx2 {vp(TMP+14)}, v{TMP+16}, {srd(SRD_WS)}, s{S_AS} offen offset:8 sc1']]
def stats_process():
    c1 = -2.0 * math.sqrt(2.0 / math.pi) * math.log2(math.e)
    c2 = c1 * 0.044715
    mb, d, m2, d2, rinv, rho, nmu, t = range(TMP+5, TMP+13)
    g = []
    g.append([f'v_cmp_ne_u32_e64 {sp(S_CM)}, v{SG+2}, s{S_TAG}'])
    g.append([f's_cmp_lg_u64 {sp(S_CM)}, 0', 's_cbranch_scc1 L_slow_st', 'L_ok_st:'])
    L = [f'v_and_b32 v{d}, 0xffff0000, v{SG}',
         f'v_and_b32 v{d2}, 0xffff0000, v{SG+1}',
         f'v_rcp_f32 v{rinv}, v{d}',
         f'v_mul_f32 v{V_IR}, v{d}, v{d2}',
         f'v_lshlrev_b32 v{mb}, 16, v{SG}',
         f'v_rcp_f32 v{rho}, v{V_IR}',
         f'v_lshlrev_b32 v{m2}, 16, v{SG+1}',
         f's_lshl_b32 s{S_T1}, s{S_W}, 8',
         f's_add_u32 s{S_T1}, s{S_T1}, {STT}',
         f'v_lshl_add_u32 v{t}, v{V_TAU}, 2, s{S_T1}',
         f'ds_write_b32 v{t}, v{rinv}',
         f'v_mul_f32 v{rinv}, v{rinv}, v{mb}',
         f'ds_write_b32 v{t}, v{rinv} offset:128',
         f's_mov_b32 s{S_XCC-1}, s{S_TAG}',
         f'v_cmp_ne_u64_e64 {sp(S_LOC)}, {vp(TMP+14)}, {sp(S_XCC-1)}',
         f'v_fma_f32 v{nmu}, -v{m2}, v{d}, -v{mb}',
         f'v_cvt_pk_bf16_f32 v{TQ+3}, -v{mb}, -v{mb}',
         f'v_cvt_pk_bf16_f32 v{TQ}, v{nmu}, v{nmu}',
         f'v_cvt_pk_bf16_f32 v{d}, v{V_IR}, v{V_IR}',
         f'v_lshlrev_b32 v{m2}, 16, v{TQ}',
         f'v_lshlrev_b32 v{d}, 16, v{d}',
         f'v_sub_f32 v{m2}, v{nmu}, v{m2}',
         f'v_sub_f32 v{d}, v{V_IR}, v{d}',
         f'v_cvt_pk_bf16_f32 v{TQ+1}, v{m2}, v{m2}',
         f'v_cvt_pk_bf16_f32 v{TQ+2}, v{V_IR}, v{d}',
         f'v_mul_f32 v{V_K}, {f32(c1)}, v{rho}',
         f'v_mul_f32 v{d}, v{rho}, v{rho}',
         f'v_mul_f32 v{V_K+1}, {f32(c2)}, v{rho}',
         f'v_mul_f32 v{V_K+1}, v{V_K+1}, v{d}',
         f'v_lshrrev_b32 v{V_IR+1}, 5, v{V_LANE}',
         f'v_lshl_add_u32 v{V_IR+1}, v{V_IR+1}, 6, s{S_T1}',
         f'v_lshrrev_b32 v{d}, 5, v{V_LANE}',
         f'v_lshl_add_u32 v{d}, v{d}, 3, v{V_I4}',
         f'v_add_u32 v{TMP+19}, {CSX}, v{d}']
    g += [[x] for x in L]
    return g
def slow_stats(a):
    a('L_slow_st:')
    a(f's_mov_b32 s{S_CNT}, 0')
    a('L_slow_st2:')
    a(f'buffer_load_dwordx4 {vr(SG,4)}, v{TMP+4}, {srd(SRD_WS)}, s{S_STA} offen sc1')
    a(f'buffer_load_dwordx2 {vp(TMP+14)}, v{TMP+16}, {srd(SRD_WS)}, s{S_AS} offen offset:8 sc1')
    a(f's_add_u32 s{S_CNT}, s{S_CNT}, 1')
    slow_note(a, 0)
    a('s_waitcnt vmcnt(0)')
    a(f'v_cmp_ne_u32_e64 {sp(S_CM)}, v{SG+2}, s{S_TAG}')
    a(f's_cmp_ge_u32 s{S_CNT}, 20000')
    a('s_cbranch_scc1 L_ok_st')
    a('s_nop 1')
    a(f's_cmp_lg_u64 {sp(S_CM)}, 0')
    a('s_cbranch_scc1 L_slow_st2')
    a('s_branch L_ok_st')

RV = 116; MBV = 96
def rv_reads():
    return [[f'ds_read_b128 {vr(RV+4*q,4)}, v{V_IR+1} offset:{q*16}'] for q in range(4)]
def cs_write():
    return [[f'ds_write_b32 v{V_CSA}, v{CS+4*b} offset:{b*512}'] for b in range(5)]
CORD = (0, 1, 2, 3, 4)
def cs_read():
    return [f'ds_read_b64 {vp(TMP+2*b)}, v{TMP+19} offset:{b*512}' for b in CORD]
def cs_prep(b):
    s, t = TMP + 2*b, TMP + 2*b + 1
    q = FQ + 4*b + (3 if b < 2 else 0)
    L = [f'v_add_f32 v{s}, v{s}, v{t}', f'v_cvt_pk_bf16_f32 v{t}, v{s}, v{s}', f'v_lshlrev_b32 v{t}, 16, v{t}',
         f'v_sub_f32 v{t}, v{s}, v{t}', f'v_cvt_pk_bf16_f32 v{q}, v{s}, v{t}']
    if b >= 2: L.append(f'v_cvt_pk_bf16_f32 v{q+1}, v{s}, v{t}')
    return L
def corr_mfma(b):
    D = (DRE, DIM) [b] if b < 2 else DM[b-2]
    A, B = (TQ, FQ + 4*b) if b < 2 else (FQ + 4*b, TQ)
    return f'v_mfma_f32_32x32x16_bf16 {vr(D,16)}, {vr(A,4)}, {vr(B,4)}, {vr(D,16)}'

def cost(l):
    t = l.strip()
    if t.startswith('@') or t.endswith(':'): return 0
    if t.startswith('ds_read_b128'): return 12
    if t.startswith('ds_'): return opt('ctr', 8)
    if t.startswith('buffer_'): return 16
    if t.startswith(post.TRANS): return 8
    return 4
def pack_step(a, mf, reads, extra, first_slot=0):
    reads = list(reads)
    n = len(mf)
    for i, m in enumerate(mf):
        a(m)
        room = (24 if '32x32' in m else 8)
        if i < first_slot: continue
        while reads and room >= cost(reads[0]):
            room -= cost(reads[0]); a(reads.pop(0))
        while not reads and extra and room > opt('minroom', 4):
            g = extra.pop(0)
            for l in g: room -= cost(l); a(l)
    for r in reads: a(r)

def stage1_loop(a, pre, mid):
    for r in frag_reads(0, 0): a(r)
    for kc in range(8):
        ex = []
        ex += pre.get(kc, [])
        if 0 < kc < 5: ex += dma_chunk(kc + 3)
        if kc == 4: ex += stats_gather_issue()
        if kc == opt('r4c', 4): ex += w2_dma('R', 4)
        if kc == 5: ex += vx_flip() + b2_dma(0)
        if kc == opt('b1c', 7): ex += b2_dma(1)
        if kc == opt('b2c', 8): ex += b2_dma(2)
        if kc == 6: ex = weave_groups(ex, stats_process())
        nst = 4 if kc < 7 else 3
        per = [ex[len(ex) * s // nst: len(ex) * (s + 1) // nst] for s in range(nst)] + [[]]
        for s in range(4):
            mf = step_mfmas(kc, s)
            q = per[s]
            if kc == 7 and s == 1: q = cs_write() + q
            if kc == 7 and s == 2: q = q + rv_reads()
            if opt('w1', 1) and not (kc == 0 and s == 0): a('@waitds')
            if s < 3:
                pack_step(a, mf, frag_reads(kc, s + 1), q)
                for g in q:
                    for l in g: a(l)
            else:
                a(mf[0])
                for l in mid.get(kc, []): a(l)
                a('@waitds')
                if kc < 7: a(f'@wait dma{kc+1}')
                a('s_barrier')
                emit(a, cap(ts, 4 + kc))
                if kc < 7:
                    rd = frag_reads(kc + 1, 0)
                    a(rd[0]); a(rd[1])
                    pack_step(a, mf[1:], rd[2:], q)
                    for g in q:
                        for l in g: a(l)
                else:
                    rd = cs_read()
                    a(rd[0]); a(rd[1])
                    a(mf[1]); a(rd[2]); a(rd[3]); a(rd[4])
                    a(mf[2])
                    for l in cs_prep(0): a(l)
                    a(mf[3])
                    for l in cs_prep(1): a(l)
                    a(mf[4])
                    for l in cs_prep(2): a(l)
                    a(corr_mfma(0))
                    for l in cs_prep(3): a(l)
                    a(corr_mfma(1))
                    for l in cs_prep(4): a(l)

def weave_groups(x, y):
    res = []; i = j = 0
    while i < len(x) or j < len(y):
        if j >= len(y) or (i < len(x) and i * len(y) <= j * len(x)):
            res.append(x[i]); i += 1
        else:
            res.append(y[j]); j += 1
    return res


U = 48; GT = 80; GA = 96; GRN = 112; LC = 132; EE = 134; ET = 19
EV = 224; DB = 240
V_TG = 8; V_PA = 24; V_PL = 23
V_OUT = 14; V_XO = 10
SFX = ['']
SC = ['']
def gelu(a, b, mf=()):
    D = DM[b]; mf = list(mf)
    for j in range(0, 16, 2): a(f'v_pk_mul_f32 {vp(GT+j)}, {vp(D+j)}, {vp(D+j)}')
    for j in range(0, 16, 2): a(f'v_pk_fma_f32 {vp(GT+j)}, {vp(GT+j)}, {vp(V_K)}, {vp(V_K)} op_sel:[0,1,0] op_sel_hi:[1,1,0]')
    for j in range(0, 16, 2): a(f'v_pk_mul_f32 {vp(GT+j)}, {vp(GT+j)}, {vp(D+j)}')
    for j in range(16):
        if j % 4 == 0 and j < 12 and mf: a(mf.pop(0))
        a(f'v_exp_f32 v{GT+j}, v{GT+j}')
    for j in range(0, 16, 2): a(f'v_pk_fma_f32 {vp(GT+j)}, {vp(GT+j)}, {vp(V_IR)}, {vp(V_IR)} op_sel_hi:[1,0,0]')
    for j in range(16):
        if j % 4 == 0 and j < 12 and mf: a(mf.pop(0))
        a(f'v_rcp_f32 v{GT+j}, v{GT+j}')
    for j in range(0, 16, 2): a(f'v_pk_mul_f32 {vp(GT+j)}, {vp(GT+j)}, {vp(D+j)}')
    a('@nf')
    so = S_A2
    if b > 0:
        so = S_T0
        a(f's_add_u32 s{S_T0}, s{S_A2}, {8*b*1024}')
        if b == 2:
            a(f's_cmp_eq_u32 s{S_I}, 3')
            a(f's_cselect_b32 s{S_T0}, {OOB}, s{S_T0}')
    for j in range(4): a(f'v_cvt_pk_bf16_f32 v{D+j}, v{GT+2*j}, v{GT+2*j+1}')
    a(f'buffer_store_dwordx4 {vr(D,4)}, v{V_L16}, {srd(SRD_WS)}, s{so} offen{SC[0]}')
    for j in range(4, 8): a(f'v_cvt_pk_bf16_f32 v{D+j}, v{GT+2*j}, v{GT+2*j+1}')
    a(f'buffer_store_dwordx4 {vr(D+4,4)}, v{V_L16}, {srd(SRD_WS)}, s{so} offen offset:1024{SC[0]} ;@id=h{b}')
    a('@f')

def seg_u(a):
    for r in range(16):
        o = r & 1; e = r & ~1; u = U + 2*r
        a(f'v_pk_mul_f32 {vp(u)}, {vp(DRE+e)}, {vp(P_K)} op_sel:[{o},0] op_sel_hi:[{o},1] neg_hi:[0,1]')
        a(f'v_pk_fma_f32 {vp(u)}, {vp(DIM+e)}, {vp(P_K)}, {vp(u)} op_sel:[{o},1,0] op_sel_hi:[{o},0,1] neg_lo:[0,1,0] neg_hi:[0,1,0]')
        a(f'v_pk_mul_f32 {vp(u)}, {vp(u)}, {vp(RV+e)} op_sel:[0,{o}] op_sel_hi:[1,{o}]')
        if r == 0: prev = u
        else:
            cur = EE if (r & 1) else LC
            cfma(a, cur, P_A, prev, u)
            prev = cur
    assert prev == EE

def seg_x_addr():
    t0, t1 = ET, ET+1
    return [[f'v_lshrrev_b32 v{t0}, 1, v{V_I4}', f'v_lshl_add_u32 v{t0}, v{V_SIG}, 8, v{t0}', f'v_add_u32 v{t0}, {SEG - 7*256}, v{t0}'],
            [f'v_cmp_eq_u32 vcc, 7, v{V_SIG}', f'v_mov_b32 v{t1}, {OOB}', f's_lshl_b32 s{S_T0}, s{S_MT}, 9',
             f's_sub_u32 s{S_T3}, s{SRD_CAR+2}, s{S_T0}', f'v_cndmask_b32 v{t1}, v{t1}, v{V_I4}, vcc'],
            [f'v_mov_b32 v{GRN+2}, s{S_TAG}', f'v_mov_b32 v{GRN+3}, s{S_TAG+1}']]
def seg_x(a, mf):
    t0, t1 = ET, ET+1
    mf = list(mf)
    a(f'ds_write_b64 v{t0}, {vp(EE)} offset:{7*256}')
    if mf: a(mf.pop(0))
    a(f's_sub_u32 s{S_T0}, s{S_T3}, 512')
    a('@waitds')
    a('s_barrier')
    for j in range(7):
        a(f'ds_read_b64 {vp(GT+2*j)}, v{t0} offset:{j*256}')
        if j in (0, 4) and mf: a(mf.pop(0))
    for j in range(1, 7):
        cfma(a, LC if j == 6 else GT+2*j, P_A16, GT+2*j-2, GT+2*j)
    cfma(a, GRN, P_A16, LC, EE)
    a(f'buffer_store_dwordx4 {vr(GRN,4)}, v{t1}, {srd(SRD_CAR)}, s{S_T0} offen sc1')

def gather_loads(a):
    for j in range(8):
        a(f'buffer_load_dwordx4 {vr(GA+4*j,4)}, v{ET+2}, {srd(SRD_CAR)}, s{S_T2 if j >= 4 else S_T3} offen offset:{(j&3)*1024} sc1')
def gather_addr():
    return [[f'v_lshrrev_b32 v{ET+3}, 5, v{V_LANE}', f'v_lshl_add_u32 v{ET+2}, v{ET+3}, 9, v{V_I4}', f's_add_u32 s{S_T2}, s{S_T3}, 4096'],
            [f's_add_u32 s{S_T1}, s{S_MT}, 1', f'v_sub_u32 v{ET+3}, s{S_T1}, v{ET+3}', f'v_lshrrev_b32 v{ET+3}, 1, v{ET+3}']]
def carry_check(a):
    prs = (S_CM, S_CM2, 106)
    def nm(j): return 'vcc' if prs[j % 3] == 106 else sp(prs[j % 3])
    a(f'v_mov_b32 v{ET}, 0')
    for j in range(10):
        if j < 8: a(f'v_cmp_eq_u64_e64 {nm(j)}, {vp(GA+4*j+2)}, {sp(S_TAG)}')
        if j >= 2: a(f'v_addc_co_u32_e64 v{ET}, {nm(j-2)}, 0, v{ET}, {nm(j-2)}')
    a(f'v_cmp_ne_u32_e64 {sp(S_CM)}, v{ET}, v{ET+3}')
def seg_car(a):
    a('@nf')
    carry_check(a)
    a(f's_cmp_lg_u64 {sp(S_CM)}, 0')
    a(f's_cbranch_scc1 L_slow_car{SFX[0]}')
    a(f'L_ok_car{SFX[0]}:')
    a('@f')
    ts(a, 16)
    for j in range(6, -1, -1):
        cfma(a, GA+4*j, P_A256, GA+4*j+4, GA+4*j)
    a(f'v_mov_b32 v{GA+2}, v{GA}\nv_mov_b32 v{GA+3}, v{GA+1}')
    a(f'v_permlane32_swap_b32 v{GA}, v{GA+2}')
    a(f'v_permlane32_swap_b32 v{GA+1}, v{GA+3}')
    cfma(a, GA, P_A128, GA+2, GA)
    cfma(a, LC, P_PW, GA, LC)
def slow_car(a):
    x = SFX[0]
    a(f'L_slow_car{x}:')
    a(f's_mov_b32 s{S_CNT}, 0')
    a(f'L_slow_car2{x}:')
    gather_loads(a)
    a(f's_add_u32 s{S_CNT}, s{S_CNT}, 1')
    slow_note(a, 1)
    a('s_waitcnt vmcnt(0)')
    carry_check(a)
    a(f's_cmp_ge_u32 s{S_CNT}, 20000')
    a(f's_cbranch_scc1 L_ok_car{x}')
    a('s_nop 1')
    a(f's_cmp_lg_u64 {sp(S_CM)}, 0')
    a(f's_cbranch_scc1 L_slow_car2{x}')
    a(f's_branch L_ok_car{x}')

def seg_p2(a):
    prev = LC
    for r in range(16):
        u = U + 2*r
        cfma(a, u, P_A, prev, u)
        prev = u
        if r & 1:
            a(f'v_cvt_pk_bf16_f32 v{DRE+r//2}, v{u-2}, v{u}')
            a(f'v_cvt_pk_bf16_f32 v{DRE+8+r//2}, v{u-1}, v{u+1}')
TRW, TRR = 11, 12
def tr_addr():
    L = V_LANE
    w_, r_, t = TRW, TRR, 13
    return [[f's_lshl_b32 s{S_F1}, s{S_W}, 11', f's_add_u32 s{S_F1}, s{S_F1}, {MISC}', f'v_lshrrev_b32 v{t}, 5, v{L}', f'v_lshl_add_u32 v{w_}, v{t}, 5, s{S_F1}',
             f'v_bfe_u32 v{r_}, v{L}, 2, 2', f'v_lshl_add_u32 v{r_}, v{t}, 3, v{r_}', f'v_lshl_add_u32 v{r_}, v{r_}, 6, s{S_F1}'],
            [f'v_lshl_add_u32 v{w_}, v{V_TAU}, 6, v{w_}', f'v_and_b32 v{t}, 1, v{L}', f'v_lshl_add_u32 v{r_}, v{t}, 5, v{r_}'],
            [f'v_bfe_u32 v{t}, v{L}, 4, 1', f'v_lshl_add_u32 v{r_}, v{t}, 4, v{r_}'],
            [f'v_bfe_u32 v{t}, v{L}, 1, 1', f'v_lshl_add_u32 v{r_}, v{t}, 3, v{r_}']]
def seg_tr(a):
    for part in range(2):
        a(f'ds_write_b128 v{TRW}, {vr(DRE+8*part,4)}')
        a(f'ds_write_b128 v{TRW}, {vr(DRE+8*part+4,4)} offset:16')
        for k in range(2):
            for u in range(2):
                a(f'ds_read_b64_tr_b16 {vp(DIM+part*8+k*4+u*2)}, v{TRR} offset:{k*1024 + u*256}')
    a(f's_add_u32 s{S_T0}, s{S_A2}, {22*1024}')
    a(f's_add_u32 s{S_T1}, s{S_A2}, {30*1024}')
    for part in range(2):
        for k in range(2):
            a(f'buffer_store_dwordx4 {vr(DIM+part*8+k*4,4)}, v{V_L16}, {srd(SRD_WS)}, s{S_T1 if part else S_T0} offen offset:{k*1024}{SC[0]}' + (' ;@id=h3' if part and k else ''))

def flag(ph):
    return [f'@wait h{ph}', f'buffer_store_dword v{V_TG}, v{V_ONE}, {srd(SRD_WS)}, s{S_FLI} offen offset:{16*ph}{SC[0]}']
POLLS = []
def poll_ld(so, off): return f'buffer_load_dword v{V_PL}, v{V_PA}, {srd(SRD_WS)}, s{so} offen offset:{off} sc1'
def poll_check(name, so, off, mask, note):
    POLLS.append((name, so, off, mask, note))
    return [f'v_cmp_ne_u32_e64 {sp(S_CM)}, v{V_PL}, s{S_TAG}', f's_and_b32 s{S_CM}, s{S_CM}, {mask:#x}',
            f's_cbranch_scc1 L_slow_{name}{SFX[0]}', f'L_ok_{name}{SFX[0]}:']
def slow_poll(a, name, so, off, mask, note):
    x = SFX[0]
    a(f'L_slow_{name}{x}:')
    a(f's_mov_b32 s{S_CNT}, 0')
    a(f'L_slow_{name}b{x}:')
    a(poll_ld(so, off))
    a(f's_add_u32 s{S_CNT}, s{S_CNT}, 1')
    slow_note(a, note)
    a(f's_cmp_ge_u32 s{S_CNT}, 20000')
    a('s_waitcnt vmcnt(0)')
    a(f's_cbranch_scc1 L_ok_{name}{x}')
    a(f'v_cmp_ne_u32_e64 {sp(S_CM)}, v{V_PL}, s{S_TAG}')
    a(f's_and_b32 s{S_CM}, s{S_CM}, {mask:#x}')
    a(f's_cbranch_scc1 L_slow_{name}b{x}')
    a(f's_branch L_ok_{name}{x}')

def a_setup():
    g = []
    for r in range(1, 4):
        g.append([f's_xor_b32 s{S_F1}, s{S_I}, {r}', f's_lshl_b32 s{S_F1}, s{S_F1}, 11', f'v_add_u32 v{VA+r-1}, s{S_F1}, v{V_L16}'])
    g.append([f'v_mov_b32 v{V_TG}, s{S_TAG}', f'v_and_b32 v{V_PA}, 15, v{V_LANE}', f'v_lshlrev_b32 v{V_PA}, 2, v{V_PA}'])
    g.append([f's_lshl_b32 s{S_FLI}, s{S_I}, 2', f's_add_u32 s{S_FLI}, s{S_FLI}, s{S_FLG}'])
    g.append([f's_lshl_b32 s{S_F1}, s{S_I}, 2', f's_add_u32 s{S_F1}, s{S_F1}, s{S_Q}', f's_lshl_b32 s{S_RIB}, s{S_F1}, 6', f's_add_u32 s{S_XB}, s{S_XB}, s{S_RIB}'])
    g.append([f'v_lshrrev_b32 v{V_XO}, 5, v{V_LANE}', f'v_lshlrev_b32 v{V_XO}, 14, v{V_XO}', f'v_lshl_add_u32 v{V_XO}, v{V_TAU}, 1, v{V_XO}',
              f'v_lshl_add_u32 v{V_OUT}, v{V_TAU}, 1, s{S_RIB}'])
    return g
def e_loads():
    g = [[f'global_load_ushort v{DB}, v{V_OUT}, {sp(kp("dskip"))}'], [f'global_load_ushort v{DB+1}, v{V_OUT}, {sp(kp("b2"))}']]
    for r in range(16):
        pre = [f's_add_u32 s{S_F1}, s{S_XB}, {r*1024}'] if r & 3 == 0 else []
        g.append(pre + [f'buffer_load_ushort v{EV+r}, v{V_XO}, {srd(SRD_X)}, s{S_F1} offen offset:{(r&3)*1024}'])
    return g
def mb_reads():
    return [[f'ds_read_b128 {vr(MBV+4*q,4)}, v{V_IR+1} offset:{128 + q*16}'] for q in range(4)]
def e_calc(a):
    a(f'v_lshlrev_b32 v{DB}, 16, v{DB}')
    a(f'v_lshlrev_b32 v{DB+1}, 16, v{DB+1}')
    a(f'v_lshlrev_b32 v{V_OUT}, 1, v{V_XO}')
    a(f's_lshl_b32 s{S_XB}, s{S_XB}, 1')
    for r in range(0, 16, 2):
        a(f'v_lshlrev_b32 v{EV+r}, 16, v{EV+r}')
        a(f'v_lshlrev_b32 v{EV+r+1}, 16, v{EV+r+1}')
        a(f'v_pk_fma_f32 {vp(MBV+r)}, {vp(EV+r)}, {vp(RV+r)}, {vp(MBV+r)} neg_lo:[0,0,1] neg_hi:[0,0,1]')
        a(f'v_pk_add_f32 {vp(EV+r)}, {vp(EV+r)}, {vp(DB)} op_sel:[0,1] op_sel_hi:[1,1]')
        a(f'v_pk_fma_f32 {vp(EV+r)}, {vp(MBV+r)}, {vp(DB)}, {vp(EV+r)} op_sel_hi:[1,0,1]')

K_OWN = [('m', 0, x) for x in range(4)] + [(p, 0, x) for p in ('re', 'im') for x in range(2)]
K_M0 = [('m', r, x) for r in range(1, 4) for x in range(2)]
K_M1 = [('m', r, x) for r in range(1, 4) for x in range(2, 4)]
K_T = [('t', r, x) for r in range(3) for x in range(2)]
K_S = [(p, r, x) for r in range(1, 4) for p in ('re', 'im') for x in range(2)]
AREG = {}
for k in K_OWN:
    AREG[k] = vr((DM[0] + 4*k[2] if k[2] < 2 else DM[1] + 4*(k[2]-2)) if k[0] == 'm' else DIM + (8 if k[0] == 'im' else 0) + 4*k[2], 4)
for n, k in enumerate(K_M0 + K_M1 + K_T + K_S): AREG[k] = rr('a', 4*n, 4)
def a_loads(ks):
    g = []; last = None
    for k in ks:
        ty, r, x = k
        if ty == 'm': base, off = (0 if x < 2 else 8), (x & 1)
        elif ty == 't': base, off = 16 + ((2*r + x) & ~3), (2*r + x) & 3
        else: base, off = (22 if ty == 're' else 30), x
        so = {0: S_AB, 22: S_T0, 30: S_T1}.get(base, S_AS)
        pre = []
        if so == S_AS and last != base:
            pre.append(f's_add_u32 s{S_AS}, s{S_AB}, {base*1024}'); last = base
        if so in (S_T0, S_T1) and k == ks[0]:
            pre += [f's_add_u32 s{S_T0}, s{S_AB}, {22*1024}', f's_add_u32 s{S_T1}, s{S_AB}, {30*1024}']
        vo = V_L16 if ty == 't' else VA + r - 1
        g.append(pre + [f'buffer_load_dwordx4 {AREG[k]}, v{vo}, {srd(SRD_WS)}, s{so} offen offset:{off*1024}' + (SC[0] if opt('pla', 0) else ' sc1')])
    return g

def epilogue_common(a):
    emit(a, cap(ts, 12))
    d = []
    for q in (1, 2):
        if opt(f'b{q}c', 6 + q) == 8: d += b2_dma(q)
    emit(a, weave(cap(seg_u), weave_groups(seg_x_addr() + mb_reads() + a_setup(), d)))
    emit(a, cap(ts, 13))
    seg_x(a, [corr_mfma(b) for b in (2, 3, 4)])
    emit(a, cap(ts, 14))

def epilogue(a):
    d3 = []
    for q in (1, 2):
        if opt(f'b{q}c', 6 + q) == 9: d3 += b2_dma(q)
    d3 += b2_dma(3)
    emit(a, weave(cap(gelu, 0), d3 + e_loads()))
    emit(a, cap(ts, 28))
    emit(a, weave(cap(gelu, 1), gather_addr() + tr_addr() + b_addr('R') + [flag(0)], 0.0, 0.9))
    e_calc(a)
    a('@wait c3')
    a('@waitds')
    a('s_barrier')
    emit(a, cap(ts, 15))
    gather_loads(a)
    emit(a, weave(cap(gelu, 2), [flag(1) + [poll_ld(S_FLG, 0)]], opt('f1', 0.3), opt('f1', 0.3) + 0.1))
    emit(a, cap(ts, 18))
    for g in b_addr('W') + b_addr('C'): emit(a, g)
    emit(a, poll_check('p0', S_FLG, 0, 0xff, 2))
    al = a_loads(K_M0 + K_M1)
    n0 = opt('n0', 6)
    for g in al[:n0]: emit(a, g)
    emit(a, weave(cap(seg_car), al[n0:]))
    emit(a, flag(2))
    emit(a, cap(seg_p2))
    emit(a, cap(ts, 29))
    emit(a, [poll_ld(S_FLG, 0)])
    emit(a, cap(seg_tr))
    emit(a, cap(ts, 17))

BR = 48; NB = 8
PR_ = 80
S_LO, S_HI = S_PB, S_PB + 1
V_CS = 18; V_CL = 13; V_CK = 11
PSL = 3072
def acc(jb): return vr(EV if jb == 0 else PR_ + 16*(jb-1), 16)
def tag_setup():
    return [[f'v_lshrrev_b32 v{V_CL}, 4, v{V_LANE}', f'v_lshlrev_b32 v{V_CL}, 2, v{V_CL}', f'v_and_b32 v{V_CK}, 15, v{V_LANE}', f'v_cmp_eq_u32 vcc, 0, v{V_CK}',
             f'v_mov_b32 v{V_CK}, {OOB}', 's_nop 0', f'v_cndmask_b32 v{V_CS}, v{V_CK}, v{V_CL}, vcc'],
            [f's_mov_b32 s{S_LO}, 0x3f80', f's_mov_b32 s{S_HI}, 0x3f800000',
             f's_mul_i32 s{S_PF}, s{S_WV}, {3*PSL}', f's_add_u32 s{S_PF}, s{S_PF}, {PART_OFF}']]
def row_sum(c):
    return [[f'v_add_u32_dpp v{c}, v{c}, v{c} row_ror:{n} row_mask:0xf bank_mask:0xf'] for n in (8, 4, 2, 1)]
def publish(jb):
    sc = SC[0] if jb == 1 else ' sc1'
    b = PR_ + 16*(jb-1)
    g = [[f's_xor_b32 s{S_F1}, s{S_WV}, {jb << 4}', f's_mul_i32 s{S_PD}, s{S_F1}, {3*PSL}', f's_add_u32 s{S_PD}, s{S_PD}, {PART_OFF + (jb-1)*PSL}']]
    for q in range(2):
        g.append([f'v_cvt_pk_bf16_f32 v{b+4*q+j}, v{b+8*q+2*j}, v{b+8*q+2*j+1}' for j in range(4)])
        g.append([f'buffer_store_dwordx4 {vr(b+4*q, 4)}, v{V_L16}, {srd(SRD_WS)}, s{S_PD} offen offset:{q*1024}{sc}'])
    c = b + 8
    g.append([f'v_add_u32 v{c}, v{b}, v{b+1}'] + [f'v_add3_u32 v{c}, v{b+j}, v{b+j+1}, v{c}' for j in (2, 4, 6)])
    g += row_sum(c)
    g.append([f'v_add_u32 v{c}, s{S_TAG}, v{c}', f'buffer_store_dword v{c}, v{V_CS}, {srd(SRD_WS)}, s{S_PD} offen offset:2048{sc}'])
    return g
def p_loads(jb):
    b = PR_ + 16*(jb-1)
    return [[f's_add_u32 s{S_AS}, s{S_PF}, {(jb-1)*PSL}', f'buffer_load_dwordx4 {vr(b,4)}, v{V_L16}, {srd(SRD_WS)}, s{S_AS} offen sc1'],
            [f'buffer_load_dwordx4 {vr(b+4,4)}, v{V_L16}, {srd(SRD_WS)}, s{S_AS} offen offset:1024 sc1'],
            [f'buffer_load_dword v{b+8}, v{V_CL}, {srd(SRD_WS)}, s{S_AS} offen offset:2048 sc1']]
def p_body(jbs):
    c = V_CK; g = []
    for n, jb in enumerate(jbs):
        b = PR_ + 16*(jb-1)
        g.append([f'v_add_u32 v{c}, v{b}, v{b+1}' if n == 0 else f'v_add3_u32 v{c}, v{b}, v{b+1}, v{c}'] + [f'v_add3_u32 v{c}, v{b+j}, v{b+j+1}, v{c}' for j in (2, 4, 6)])
    rs = row_sum(c)
    b0 = PR_ + 16*(jbs[0]-1) + 8
    for n, jb in enumerate(jbs):
        b = PR_ + 16*(jb-1) + 8
        rs[n].append(f'v_subrev_u32 v{b}, s{S_TAG}, v{b}')
        if n: rs[n].append(f'v_add_u32 v{b0}, v{b0}, v{b}')
    g += rs
    g.append([f'v_cmp_ne_u32_e64 {sp(S_CM)}, v{c}, v{b0}'])
    return g
PCHK = []
def p_check(jbs):
    nm = ''.join(map(str, jbs)); PCHK.append(jbs)
    return p_body(jbs) + [[f's_cmp_lg_u64 {sp(S_CM)}, 0', f's_cbranch_scc1 L_slow_q{nm}{SFX[0]}', f'L_ok_q{nm}{SFX[0]}:']]
def slow_part(a, jbs):
    x = ''.join(map(str, jbs)) + SFX[0]
    a(f'L_slow_q{x}:')
    a(f's_mov_b32 s{S_CNT}, 0')
    a(f'L_slow_qb{x}:')
    for jb in jbs:
        for g in p_loads(jb): emit(a, g)
    a(f's_add_u32 s{S_CNT}, s{S_CNT}, 1')
    slow_note(a, 4 + jbs[0])
    a('s_waitcnt vmcnt(0)')
    for g in p_body(jbs): emit(a, g)
    a(f's_cmp_ge_u32 s{S_CNT}, 20000')
    a(f's_cbranch_scc1 L_ok_q{x}')
    a('s_nop 1')
    a(f's_cmp_lg_u64 {sp(S_CM)}, 0')
    a(f's_cbranch_scc1 L_slow_qb{x}')
    a(f's_branch L_ok_q{x}')

def stage2(a):
    early = K_OWN + K_M0 + K_M1 + K_T
    ne = opt('ne', 0)
    seq = []
    for k in early: seq += [(k, 3), (k, 2)]
    seq += [(k, 1) for k in early[:ne]]
    n_late = len(seq)
    seq += [(k, 3) for k in K_S]
    n3 = len(seq)
    seq += [(k, 2) for k in K_S]
    n2 = len(seq)
    seq += [(k, 1) for k in early[ne:] + K_S]
    n1 = len(seq)
    seq += [(k, 0) for k in early + K_S]
    N = len(seq)
    fill = [[] for _ in range(N + 1)]
    def put(groups, p0, p1=None):
        if p1 is None: p1 = p0 + len(groups)
        n = len(groups)
        for i, g in enumerate(groups): fill[min(N - 1, p0 + i * (p1 - p0) // n)].append(g)
    g2, f3, g3 = opt('g2', 6), opt('f3', 10), opt('g3', 34)
    put(tag_setup(), 1)
    put([poll_check('p2', S_FLG, 0, 0xf00, 3)] + a_loads(K_T), g2)
    put([flag(3)], f3)
    put([[poll_ld(S_FLG, 0)]], g3 - opt('pl', 14))
    put([poll_check('p3', S_FLG, 0, 0xf000, 4)] + a_loads(K_S), g3)
    put(publish(3), n3); put(publish(2), n2); put(publish(1), n1)
    put(p_loads(1), N - opt('r1', 14))
    put(p_loads(3), N - opt('r3', 26))
    put(p_loads(2), N - opt('r2', 22))
    D = opt('bd', 5)
    started = set()
    def rd(n):
        k, jb = seq[n]
        return b_read(k, jb, BR + 4 * (n % NB))
    for n in range(D):
        for l in rd(n): a(l)
    for n, (k, jb) in enumerate(seq):
        c = acc(jb) if (jb in started or jb == 0) else '0'
        started.add(jb)
        a(f'v_mfma_f32_32x32x16_bf16 {acc(jb)}, {AREG[k]}, {vr(BR + 4*(n % NB), 4)}, {c}')
        if n + D < N:
            for l in rd(n + D): a(l)
        for g in fill[n]:
            for l in g: a(l)
        st = {0: 19, n_late - 1: 20, n3 - 1: 21, n2 - 1: 22, n1 - 1: 23}
        if n in st: emit(a, cap(ts, st[n]))

def final(a):
    emit(a, cap(ts, 24))
    for g in p_check((3, 2, 1)): emit(a, g)
    emit(a, cap(ts, 30))
    for r in range(0, 16, 2):
        a(f's_add_u32 s{S_T3}, s{S_XB}, {r*2048}')
        for jb in (3, 2, 1):
            a(f'v_dot2_f32_bf16 v{EV+r}, v{PR_+16*(jb-1)+r//2}, s{S_LO}, v{EV+r}')
            a(f'v_dot2_f32_bf16 v{EV+r+1}, v{PR_+16*(jb-1)+r//2}, s{S_HI}, v{EV+r+1}')
        if r: a(f'buffer_store_dword v{EV+r-1}, v{V_OUT}, {srd(SRD_OUT)}, s{S_T2} offen offset:2048')
        a(f's_mov_b32 s{S_T2}, s{S_T3}')
        a(f'buffer_store_dword v{EV+r}, v{V_OUT}, {srd(SRD_OUT)}, s{S_T3} offen')
    a(f'buffer_store_dword v{EV+15}, v{V_OUT}, {srd(SRD_OUT)}, s{S_T3} offen offset:2048')
    emit(a, cap(ts, 27))
    a(f'v_mov_b32 v{V_TG+1}, s{S_TAG+1}')
    a(f's_mov_b32 s{S_T1}, {OOB}')
    a(f's_cmp_eq_u32 s{S_WV}, {15*64}')
    a(f's_cselect_b32 s{S_T0}, {EPOCH_OFF}, s{S_T1}')
    a(f'buffer_store_dwordx2 {vp(V_TG)}, v{V_ONE}, {srd(SRD_WS)}, s{S_T0} offen sc1')

def tail(a, sfx, sc):
    SFX[0] = sfx; SC[0] = sc
    del POLLS[:]; del PCHK[:]
    epilogue(a)
    stage2(a)
    final(a)
    emit(a, cap(ts_store))
    a('s_endpgm')
    a('@raw')
    slow_car(a)
    for p in list(POLLS): slow_poll(a, *p)
    for p in list(PCHK): slow_part(a, p)
    a('@endraw')

def gen(name):
    a = Asm()
    a('s_cmp_ge_u32 s2, 256')
    a(f's_cbranch_scc1 L_end')
    if TSON:
        a(f'v_mov_b32 v{V_TS}, 0'); emit(a, cap(ts, 0))
    a(f's_load_dwordx16 s[{KA}:{KA+15}], s[0:1], 0')
    a(f's_load_dwordx16 s[{KA+16}:{KA+31}], s[0:1], 64')
    a(f's_load_dwordx2 s[{KA+32}:{KA+33}], s[0:1], 128')
    a(f's_getpc_b64 s[6:7]')
    if opt('cpf', 1):
        a(f's_lshr_b32 s{S_T0}, s2, 3')
        a(f'v_lshrrev_b32 v2, 5, v0')
        a(f'v_lshl_add_u32 v2, s{S_T0}, 3, v2')
        a(f'v_lshlrev_b32 v2, 7, v2')
    else:
        a(f'v_lshlrev_b32 v2, 7, v0')
    a(f'v_min_u32 v3, L_fast_end-{name}-64, v2')
    a(f'global_load_dword v{V_JUNK}, v3, s[6:7] ;@junk')
    ids(a)
    if TSON: a('v_mov_b32 v3, 0')
    lane_setup(a)
    rot = opt('rot', 3)
    if rot == 3:
        a(f's_add_u32 s{S_KB}, s{S_MT}, s{S_G}')
        a(f's_mul_i32 s{S_T0}, s{S_KB}, 43')
        a(f's_lshr_b32 s{S_T0}, s{S_T0}, 7')
        a(f's_mul_i32 s{S_T0}, s{S_T0}, 3')
        a(f's_sub_u32 s{S_KB}, s{S_KB}, s{S_T0}')
        a(f's_mul_i32 s{S_KB}, s{S_KB}, 384')
    elif rot == 4:
        a(f's_add_u32 s{S_KB}, s{S_MT}, s{S_G}')
        a(f's_and_b32 s{S_KB}, s{S_KB}, 3')
        a(f's_lshl_b32 s{S_KB}, s{S_KB}, 8')
    elif rot:
        a(f's_lshl_b32 s{S_KB}, s{S_MT}, 1')
        a(f's_add_u32 s{S_KB}, s{S_KB}, s{S_G}')
        a(f's_and_b32 s{S_KB}, s{S_KB}, 7')
        a(f's_lshl_b32 s{S_KB}, s{S_KB}, 7')
    else:
        a(f's_mov_b32 s{S_KB}, 0')
    a(f's_lshl_b32 s{S_T2}, s{S_MT}, 4')
    a(f's_add_u32 s{S_T2}, s{S_T2}, s{S_G}')
    a(f's_lshl_b32 s{S_T2}, s{S_T2}, 2')
    a(f's_add_u32 s{S_T2}, s{S_T2}, s{S_W}')
    a(f's_lshl_b32 s{S_T2}, s{S_T2}, 11')
    a(f's_mov_b32 s{S_T1}, {EPOCH_OFF}')
    a('s_waitcnt lgkmcnt(0)')
    emit(a, cap(ts, 25))
    first_loads(a)
    so = opt('so', 'ca')
    items = dict(s=[cap(stat_loads)], p=[cap(param_loads) + cap(late_setup)], S=[[l] for l in cap(row_stats)], P=[[l] for l in cap(params)])
    d1 = dma_chunk(1, 'wrx')
    items['1'] = d1[:6]; items['x'] = d1[6:]
    items['2'] = dma_chunk(2); items['3'] = dma_chunk(3)
    items['c'] = dma_chunk(0); items['a'] = [cap(ts, 1) + cap(addr_setup)]
    def seq(spec):
        g = []
        for c in spec: g += items[c]
        return g
    for g in seq(opt('so', 'cap1x')): emit(a, g)
    emit(a, cap(ts, 2))
    a('@wait dma0')
    a('@waitds')
    a('s_barrier')
    emit(a, cap(ts, 3))
    pre = {k: seq(opt(f'c{k}', d)) for k, d in ((0, 's2'), (1, '3'), (2, ''))}
    mid = {k: [l for g in seq(opt(f'm{k}', d)) for l in g] for k, d in ((0, 'P'), (1, 'S'), (2, ''))}
    stage1_loop(a, pre, mid)
    epilogue_common(a)
    if opt('forceslow', 0): a(f's_mov_b64 {sp(S_LOC)}, -1')
    a(f's_cmp_lg_u64 {sp(S_LOC)}, 0')
    a('s_cbranch_scc1 L_remote')
    a('@snap br')
    tail(a, '', '')
    a('L_fast_end:')
    a('@raw')
    slow_stats(a)
    a('@endraw')
    a('L_remote:')
    a('@restore br')
    a('@tsreset 14')
    a('s_nop 15\ns_nop 7')
    if TSON: a(f'v_writelane_b32 v3, s{S_LOC}, 8')
    tail(a, '_r', ' sc1')
    a('L_end:')
    a('s_endpgm')
    return post.process(ts_expand(a.lines))

if __name__ == '__main__':
    if len(sys.argv) > 1 and sys.argv[1] == 'ts': TSON = True
    name = KNAME + '_kernel'
    body = gen(name)
    s = header([(name, (256,1,1), (256,1,1), LDS_TOTAL)]) + kernel_begin(name) + '\n'.join(body) + '\n' + rodata_begin() + descriptor(name, 512, 102, 256)
    open(os.environ.get('OUT', 'y.s'), 'w').write(s)
```
